```python
import torch

def _softmax(x, axis=-1):
    return torch.softmax(x, dim=axis)
def _gelu(x):
    return torch.nn.functional.gelu(x, approximate="tanh")
def _silu(x):
    return torch.nn.functional.silu(x)
def _sigmoid(x):
    return torch.sigmoid(x)
def _layernorm(x, axis=-1, eps=1e-5):
    m = x.mean(dim=axis, keepdim=True)
    v = x.var(dim=axis, keepdim=True, unbiased=False)
    return (x - m) / torch.sqrt(v + eps)
def _scatter_add(tgt, idx, src, axis=0):
    return tgt.clone().index_add_(axis, idx, src)
def _segment_sum(src, seg, n):
    out = torch.zeros((n,) + src.shape[1:], dtype=src.dtype)
    return out.index_add_(0, seg, src)
def _pad(x, pw):
    flat = tuple(v for pair in reversed(pw) for v in pair)
    return torch.nn.functional.pad(x, flat)

kernel_name = 'concat_heads__mha_block_cached__mha_block_cached__near_ridge'

def setup_inputs():

    _w = (lambda a: (lambda t: t.to(torch.bfloat16) if t.is_floating_point() else t)(torch.as_tensor(a)))
    def _A_setup():
        B, Sq, D = 8, 144, 448
        H, Sk, Dh = 16, 512, 256
        return {
            "x": _w((lambda *s: torch.randn(*s, dtype=torch.bfloat16) * 0.8)(B, Sq, D)),
            "k_cache": _w((lambda *s: torch.randn(*s, dtype=torch.bfloat16) * 0.8)(B, H, Sk, Dh)),
            "v_cache": _w((lambda *s: torch.randn(*s, dtype=torch.bfloat16) * 0.05)(B, H, Sk, Dh)),
            "wq": _w((lambda *s: torch.randn(*s, dtype=torch.bfloat16) * 0.8)(D, H * Dh) * (D ** -0.5)),
            "wo": _w((lambda *s: torch.randn(*s, dtype=torch.bfloat16) * 0.05)(H * Dh, D) * ((H * Dh) ** -0.5)),
        }
    _A_in = _A_setup()

    def _B_setup():
        B, Sq, D = 8, 144, 448
        H, Sk, Dh = 16, 512, 256
        return {
            "x": _w((lambda *s: torch.randn(*s, dtype=torch.bfloat16) * 0.8)(B, Sq, D)),
            "k_cache": _w((lambda *s: torch.randn(*s, dtype=torch.bfloat16) * 0.8)(B, H, Sk, Dh)),
            "v_cache": _w((lambda *s: torch.randn(*s, dtype=torch.bfloat16) * 0.05)(B, H, Sk, Dh)),
            "wq": _w((lambda *s: torch.randn(*s, dtype=torch.bfloat16) * 0.8)(D, H * Dh) * (D ** -0.5)),
            "wo": _w((lambda *s: torch.randn(*s, dtype=torch.bfloat16) * 0.05)(H * Dh, D) * ((H * Dh) ** -0.5)),
        }
    _B_in = _B_setup()

    return {
        "A_x": _A_in["x"],
        "A_k_cache": _A_in["k_cache"],
        "A_v_cache": _A_in["v_cache"],
        "A_wq": _A_in["wq"],
        "A_wo": _A_in["wo"],
        "B_x": _B_in["x"],
        "B_k_cache": _B_in["k_cache"],
        "B_v_cache": _B_in["v_cache"],
        "B_wq": _B_in["wq"],
        "B_wo": _B_in["wo"],
    }

def reference(A_x, A_k_cache, A_v_cache, A_wq, A_wo, B_x, B_k_cache, B_v_cache, B_wq, B_wo):
    def _A_ref(x, k_cache, v_cache, wq, wo):
        B, Sq, D = x.shape
        H, Dh = 16, 256
        q = (lambda x, *d: x.permute(*d))((x @ wq).reshape(B, Sq, H, Dh), 0, 2, 1, 3)
        scores = torch.einsum("bhqd,bhkd->bhqk", q, k_cache) * (Dh ** -0.5)
        p = _softmax(scores, axis=-1)
        o = torch.einsum("bhqk,bhkd->bhqd", p, v_cache)
        return (lambda x, *d: x.permute(*d))(o, 0, 2, 1, 3).reshape(B, Sq, H * Dh) @ wo

    def _B_ref(x, k_cache, v_cache, wq, wo):
        B, Sq, D = x.shape
        H, Dh = 16, 256
        q = (lambda x, *d: x.permute(*d))((x @ wq).reshape(B, Sq, H, Dh), 0, 2, 1, 3)
        scores = torch.einsum("bhqd,bhkd->bhqk", q, k_cache) * (Dh ** -0.5)
        p = _softmax(scores, axis=-1)
        o = torch.einsum("bhqk,bhkd->bhqd", p, v_cache)
        return (lambda x, *d: x.permute(*d))(o, 0, 2, 1, 3).reshape(B, Sq, H * Dh) @ wo

    a = _A_ref(A_x, A_k_cache, A_v_cache, A_wq, A_wo)
    b = _B_ref(B_x, B_k_cache, B_v_cache, B_wq, B_wo)
    return torch.concatenate([a, b], axis=-1)
```

```python
import sys

KNAME = "concat_heads__mha_block_cached__mha_block_cached__near_ridge_kernel"
DBG = int(sys.argv[1]) if len(sys.argv) > 1 else 0

R = 7
D = 6
STG = 16384
RING = R * STG
MISC = RING
XS = MISC
QSI = MISC + 16384
PREG = MISC
LDS_TOTAL = 163840
NT = 62
PART_BYTES = 143360
DBG_OFF = 64 * 1024 * 1024


class Asm:
    def __init__(self):
        self.lines = []
        self.uid = 0

    def __call__(self, s):
        self.lines.append("    " + s)

    def label(self, s):
        self.lines.append(s + ":")

    def c(self, s):
        self.lines.append("    ; " + s)

    def newlabel(self, p="L"):
        self.uid += 1
        return "%s_%d" % (p, self.uid)

    def text(self):
        return "\n".join(self.lines) + "\n"


def vr(i, n=1):
    return "v%d" % i if n == 1 else "v[%d:%d]" % (i, i + n - 1)


def ar(i, n=1):
    return "a%d" % i if n == 1 else "a[%d:%d]" % (i, i + n - 1)


def sr(i, n=1):
    return "s%d" % i if n == 1 else "s[%d:%d]" % (i, i + n - 1)


o = Asm()

S_BLK, S_B, S_H, S_W = 4, 5, 6, 7
SRD_X, SRD_K, SRD_V, SRD_WQ, SRD_WO, SRD_WS = 8, 12, 16, 20, 24, 28
S_W4096, S_C, S_T, S_XOFF, S_KVOFF, S_WQOFF, S_WOOFF, S_PIDX = 32, 33, 34, 35, 36, 37, 38, 39
S_J, S_KST, S_VST, S_T0, S_T1, S_T2, S_DK, S_DV, S_KPF = 40, 41, 42, 43, 44, 45, 46, 47, 48
S_EX = 50
S_PTR = 52
S_ACT = 49
S_MT0, S_MT1 = 66, 67
V_TID, V_L = 0, 1
V_T = 2
V_KA = 10
V_VA = 18
V_DK = 22
V_DV = 26
V_DO = 28
V_DW = 32
V_WA = 36
V_WSH = 40
V_M_OWN, V_L_OWN, V_M_SH, V_L_SH = 42, 43, 44, 45
V_X = 46
V_AB = 56
NAB = 6
V_S_OWN, V_S_SH = 80, 96
V_P_OWN, V_P_SH = 112, 120
V_QF_OWN, V_QF_SH = 128, 192
V_ACC = 128
V_ACC_SH = 96
V_XSB = 80
V_WCUR = 88
V_XS0 = 94
V_XOFF = 95
A_X = 0
A_O_OWN, A_O_SH = 0, 128
A_OF_OWN, A_OF_SH = 0, 128

vm_queue = []


def vm_issue(tag):
    vm_queue.append(tag)


def vm_wait_for(tag_pred):
    last = -1
    for i, t in enumerate(vm_queue):
        if tag_pred(t):
            last = i
    n = len(vm_queue) - 1 - last
    assert n <= 63
    o("s_waitcnt vmcnt(%d)" % n)


def stage_of(t):
    return (t % R) * STG


def dbg_dump(regs, kind="v", base=0):
    o.c("DEBUG DUMP")
    o("s_waitcnt vmcnt(0) lgkmcnt(0)")
    o("s_nop 15")
    o("s_mul_i32 %s, s2, %d" % (sr(S_T0), 4 * 512 * 256))
    o("s_add_u32 %s, %s, %d" % (sr(S_T0), sr(S_T0), DBG_OFF))
    o("s_mul_i32 %s, %s, %d" % (sr(S_T1), sr(S_W), 512 * 256))
    o("s_add_u32 %s, %s, %s" % (sr(S_T0), sr(S_T0), sr(S_T1)))
    o("v_lshlrev_b32 %s, 2, %s" % (vr(V_T), vr(V_L)))
    for idx, rg in enumerate(regs):
        idx2 = idx + base
        o("s_add_u32 %s, %s, %d" % (sr(S_T1), sr(S_T0), idx2 * 256))
        if kind == "v":
            o("buffer_store_dword %s, %s, %s, %s offen" % (vr(rg), vr(V_T), sr(SRD_WS, 4), sr(S_T1)))
        else:
            o("buffer_store_dword %s, %s, %s, %s offen" % (ar(rg), vr(V_T), sr(SRD_WS, 4), sr(S_T1)))
    o("s_waitcnt vmcnt(0)")


def emit_prologue():
    o("s_cmp_ge_u32 s2, 256")
    o("s_cbranch_scc1 L_end")
    o("s_and_b32 %s, s2, 15" % sr(S_H))
    o("s_lshr_b32 %s, s2, 4" % sr(S_B))
    o("s_and_b32 %s, %s, 7" % (sr(S_B), sr(S_B)))
    o("s_lshr_b32 %s, s2, 7" % sr(S_BLK))
    o("s_mul_i32 %s, %s, 40" % (sr(S_T0), sr(S_BLK)))
    o("s_add_u32 s64, s0, %s" % sr(S_T0))
    o("s_addc_u32 s65, s1, 0")
    o("s_load_dwordx8 s[52:59], s[64:65], 0")
    o("s_load_dwordx2 s[60:61], s[64:65], 32")
    o("s_load_dwordx2 s[62:63], s[0:1], 96")
    o("v_lshrrev_b32 %s, 6, v0" % vr(V_T))
    o("v_and_b32 %s, 63, v0" % vr(V_L))
    o("s_nop 1")
    o("v_readfirstlane_b32 %s, %s" % (sr(S_W), vr(V_T)))
    o("s_waitcnt lgkmcnt(0)")
    sizes = [(SRD_X, 52, 8 * 144 * 448 * 2), (SRD_K, 54, 8 * 16 * 512 * 256 * 2), (SRD_V, 56, 8 * 16 * 512 * 256 * 2),
             (SRD_WQ, 58, 448 * 4096 * 2), (SRD_WO, 60, 4096 * 448 * 2), (SRD_WS, 62, 268435456)]
    for srd, p, sz in sizes:
        o("s_mov_b32 %s, %s" % (sr(srd), sr(p)))
        o("s_and_b32 %s, %s, 0xffff" % (sr(srd + 1), sr(p + 1)))
        o("s_mov_b32 %s, %d" % (sr(srd + 2), sz))
        o("s_mov_b32 %s, 0x20000" % sr(srd + 3))
    o("s_lshl_b32 %s, %s, 12" % (sr(S_W4096), sr(S_W)))
    o("s_mov_b32 %s, 0x3db8aa3b" % sr(S_C))
    o("s_mov_b32 %s, 0x41000000" % sr(S_T))
    o("s_lshl_b32 %s, %s, 4" % (sr(S_T0), sr(S_B)))
    o("s_or_b32 %s, %s, %s" % (sr(S_T0), sr(S_T0), sr(S_H)))
    o("s_lshl_b32 %s, %s, 18" % (sr(S_KVOFF), sr(S_T0)))
    o("s_lshl_b32 %s, %s, 7" % (sr(S_T1), sr(S_BLK)))
    o("s_or_b32 %s, %s, %s" % (sr(S_T1), sr(S_T1), sr(S_T0)))
    o("s_mul_i32 %s, %s, %d" % (sr(S_PIDX), sr(S_T1), PART_BYTES))
    o("s_lshl_b32 %s, %s, 9" % (sr(S_WQOFF), sr(S_H)))
    o("s_mul_i32 %s, %s, %d" % (sr(S_WOOFF), sr(S_H), 256 * 896))
    o("s_mul_i32 %s, %s, %d" % (sr(S_XOFF), sr(S_B), 144 * 896))
    l31, hh, l15, r_, c_, g1 = V_T, V_T + 1, V_T + 2, V_T + 3, V_T + 4, V_T + 5
    t6, t7 = V_T + 6, V_T + 7
    o("v_and_b32 %s, 31, %s" % (vr(l31), vr(V_L)))
    o("v_lshrrev_b32 %s, 5, %s" % (vr(hh), vr(V_L)))
    o("v_and_b32 %s, 15, %s" % (vr(l15), vr(V_L)))
    o("v_bfe_u32 %s, %s, 2, 2" % (vr(r_), vr(V_L)))
    o("v_and_b32 %s, 3, %s" % (vr(c_), vr(V_L)))
    o("v_bfe_u32 %s, %s, 4, 1" % (vr(g1), vr(V_L)))
    o("v_xor_b32 %s, %s, %s" % (vr(t6), vr(hh), vr(l15)))
    o("v_lshlrev_b32 %s, 4, %s" % (vr(t6), vr(t6)))
    o("v_lshl_add_u32 %s, %s, 9, %s" % (vr(V_KA), vr(l31), vr(t6)))
    o("v_lshl_add_u32 %s, %s, 10, %s" % (vr(V_XS0), vr(l15), vr(t6)))
    o("v_add_u32 %s, %d, %s" % (vr(V_XS0), XS, vr(V_XS0)))
    o("v_lshl_add_u32 %s, %s, 2, %s" % (vr(t6), vr(hh), vr(r_)))
    o("v_lshlrev_b32 %s, 9, %s" % (vr(t6), vr(t6)))
    o("v_lshlrev_b32 %s, 6, %s" % (vr(t7), vr(r_)))
    o("v_lshl_add_u32 %s, %s, 5, %s" % (vr(t7), vr(g1), vr(t7)))
    o("v_add_u32 %s, %s, %s" % (vr(t6), vr(t6), vr(t7)))
    o("v_lshrrev_b32 %s, 1, %s" % (vr(V_X), vr(c_)))
    o("v_and_b32 %s, 1, %s" % (vr(V_X + 1), vr(c_)))
    o("v_lshl_add_u32 %s, %s, 4, %s" % (vr(V_VA), vr(V_X), vr(t6)))
    o("v_lshl_add_u32 %s, %s, 3, %s" % (vr(V_VA), vr(V_X + 1), vr(V_VA)))
    o("v_lshl_add_u32 %s, %s, 3, %s" % (vr(t6), vr(hh), vr(r_)))
    o("v_lshlrev_b32 %s, 9, %s" % (vr(t6), vr(t6)))
    o("v_add_u32 %s, %s, %s" % (vr(t6), vr(t6), vr(t7)))
    o("v_lshl_add_u32 %s, %s, 4, %s" % (vr(V_WA), vr(V_X + 1), vr(t6)))
    o("v_lshl_add_u32 %s, %s, 3, %s" % (vr(V_WA), vr(V_X), vr(V_WA)))
    for b in range(1, 4):
        o("v_xor_b32 %s, %d, %s" % (vr(V_WA + b), b << 6, vr(V_WA)))
        o("v_xor_b32 %s, %d, %s" % (vr(V_VA + b), b << 6, vr(V_VA)))
    for s in range(1, 8):
        o("v_xor_b32 %s, %d, %s" % (vr(V_KA + s), s << 5, vr(V_KA)))
    for i in range(2):
        o("s_lshl_b32 %s, %s, 1" % (sr(S_T0), sr(S_W)))
        o("s_add_u32 %s, %s, %d" % (sr(S_T0), sr(S_T0), i))
        o("s_and_b32 %s, %s, 3" % (sr(S_T1), sr(S_T0)))
        o("s_lshl_b32 %s, %s, 6" % (sr(S_T1), sr(S_T1)))
        o("s_lshr_b32 %s, %s, 2" % (sr(S_T0), sr(S_T0)))
        o("s_lshl_b32 %s, %s, 8" % (sr(S_T0), sr(S_T0)))
        o("v_xor_b32 %s, %s, %s" % (vr(V_WSH + i), sr(S_T1), vr(V_WA)))
        o("v_add_u32 %s, %s, %s" % (vr(V_WSH + i), sr(S_T0), vr(V_WSH + i)))
    sw0, sw1 = V_X + 2, V_X + 3
    o("v_lshlrev_b32 %s, 2, %s" % (vr(t6), vr(hh)))
    o("v_xor_b32 %s, %s, %s" % (vr(sw0), vr(l31), vr(t6)))
    o("v_xor_b32 %s, 8, %s" % (vr(sw1), vr(sw0)))
    o("v_lshlrev_b32 %s, 4, %s" % (vr(sw0), vr(sw0)))
    o("v_lshlrev_b32 %s, 4, %s" % (vr(sw1), vr(sw1)))
    o("s_lshl_b32 %s, %s, 3" % (sr(S_T0), sr(S_W)))
    o("v_add_u32 %s, %s, %s" % (vr(t6), sr(S_T0), vr(hh)))
    for p in range(2):
        o("v_lshl_add_u32 %s, %s, 9, %s" % (vr(V_DV + p), vr(t6), vr(sw0 + p)))
    for u in range(4):
        o("v_add_u32 %s, %d, %s" % (vr(t7), 2 * u, vr(t6)))
        o("v_lshl_add_u32 %s, %s, 13, %s" % (vr(V_DW + u), vr(t7), vr(sw0 + (u & 1))))
        if u:
            o("v_subrev_u32 %s, %d, %s" % (vr(V_DW + u), 1024 * u, vr(V_DW + u)))
        o("s_movk_i32 %s, 896" % sr(S_T1))
        o("v_mad_u32_u24 %s, %s, %s, %s" % (vr(V_DO + u), vr(t7), sr(S_T1), vr(sw0 + (u & 1))))
        if u:
            o("v_subrev_u32 %s, %d, %s" % (vr(V_DO + u), 1024 * u, vr(V_DO + u)))
        o("s_and_b32 %s, %s, 1" % (sr(S_T1), sr(S_W)))
        o("s_lshl_b32 %s, %s, 3" % (sr(S_T1), sr(S_T1)))
        o("s_add_u32 %s, %s, %d" % (sr(S_T1), sr(S_T1), 2 * u))
        o("v_add_u32 %s, %s, %s" % (vr(t7), sr(S_T1), vr(hh)))
        o("v_xor_b32 %s, %s, %s" % (vr(t7), vr(l31), vr(t7)))
        o("v_lshlrev_b32 %s, 4, %s" % (vr(t7), vr(t7)))
        o("v_lshl_add_u32 %s, %s, 9, %s" % (vr(V_DK + u), vr(t6), vr(t7)))
    o("s_movk_i32 %s, 896" % sr(S_T1))
    o("v_lshlrev_b32 %s, 4, %s" % (vr(t7), vr(hh)))
    o("v_mad_u32_u24 %s, %s, %s, %s" % (vr(V_XOFF), vr(l31), sr(S_T1), vr(t7)))


def emit_dma(t):
    if t >= NT:
        return
    o.c("DMA tile %d" % t)
    o("s_add_u32 %s, %s, %d" % (sr(S_T0), sr(S_W4096), stage_of(t)))
    o("s_mov_b32 m0, %s" % sr(S_T0))
    if t < 14:
        o("s_add_u32 %s, %s, %d" % (sr(S_T1), sr(S_WQOFF), t * 32 * 8192))
        srd, voff = SRD_WQ, [V_DW + u for u in range(4)]
    elif t < 46:
        j = (t - 14) // 2
        o("s_add_u32 %s, %s, %d" % (sr(S_T1), sr(S_KVOFF), j * STG))
        if (t - 14) % 2 == 0:
            srd, voff = SRD_K, [V_DK + u for u in range(4)]
        else:
            srd, voff = SRD_V, [V_DV + (u & 1) for u in range(4)]
    else:
        i = t - 46
        cb, di = i >> 3, i & 7
        o("s_add_u32 %s, %s, %d" % (sr(S_T1), sr(S_WOOFF), di * 32 * 896 + cb * 512))
        srd, voff = SRD_WO, [V_DO + u for u in range(4)]
    for u in range(4):
        o("buffer_load_dwordx4 %s, %s, %s offen offset:%d lds" % (vr(voff[u]), sr(srd, 4), sr(S_T1), u * 1024))
        vm_issue(("dma", t))


def frag_stream(items, nbuf=NAB):
    n = len(items)
    L = nbuf - 1
    issued = []

    def do_reads(i):
        slot = V_AB + 4 * (i % nbuf)
        ins = items[i][0](slot)
        for x in ins:
            o(x)
        issued.append(len(ins))
    for i in range(min(L, n)):
        do_reads(i)
    for i in range(n):
        if i + L < n:
            do_reads(i + L)
        cnt = sum(issued[i + 1:])
        o("s_waitcnt lgkmcnt(%d)" % cnt)
        slot = V_AB + 4 * (i % nbuf)
        for x in items[i][1](slot):
            o(x)


def tr_reads(addr_reg, off0, off1):
    return lambda slot: ["ds_read_b64_tr_b16 %s, %s offset:%d" % (vr(slot, 2), vr(addr_reg), off0),
                         "ds_read_b64_tr_b16 %s, %s offset:%d" % (vr(slot + 2, 2), vr(addr_reg), off1)]


def mfma(dst, a, b, c=None, dk="v", bk="v", ak="v"):
    d = (vr if dk == "v" else ar)(dst, 16)
    A = (vr if ak == "v" else ar)(a, 4)
    B = (vr if bk == "v" else ar)(b, 4)
    C = d if c is None else str(c)
    return "v_mfma_f32_32x32x16_bf16 %s, %s, %s, %s" % (d, A, B, C)


def emit_qproj():
    o.c("==== Q projection ====")
    o("s_mul_i32 %s, %s, %d" % (sr(S_T2), sr(S_B), 144 * 896))
    o("s_add_u32 %s, %s, %d" % (sr(S_T2), sr(S_T2), 128 * 896))
    for u in range(4):
        o("s_lshl_b32 %s, %s, 2" % (sr(S_T0), sr(S_W)))
        o("s_add_u32 %s, %s, %d" % (sr(S_T0), sr(S_T0), u))
        o("v_xor_b32 %s, %s, %s" % (vr(V_T), sr(S_T0), vr(V_L)))
        o("v_lshlrev_b32 %s, 4, %s" % (vr(V_T), vr(V_T)))
        o("s_mul_i32 %s, %s, 896" % (sr(S_T1), sr(S_T0)))
        o("v_add_u32 %s, %s, %s" % (vr(V_T), sr(S_T1), vr(V_T)))
        o("s_lshl_b32 %s, %s, 10" % (sr(S_T0), sr(S_T0)))
        o("s_add_u32 %s, %s, %d" % (sr(S_T0), sr(S_T0), XS))
        o("s_mov_b32 m0, %s" % sr(S_T0))
        o("s_nop 0")
        o("buffer_load_dwordx4 %s, %s, %s offen lds" % (vr(V_T), sr(SRD_X, 4), sr(S_T2)))
        vm_issue(("xs", u))
    emit_dma(0)
    o("s_mul_i32 %s, %s, %d" % (sr(S_T0), sr(S_W), 32 * 896))
    o("s_add_u32 %s, %s, %s" % (sr(S_T0), sr(S_T0), sr(S_XOFF)))
    for s in range(28):
        o("buffer_load_dwordx4 %s, %s, %s, %s offen offset:%d" % (ar(A_X + 4 * s, 4), vr(V_XOFF), sr(SRD_X, 4), sr(S_T0), 32 * s))
        vm_issue(("x", s))
    for t in range(1, D):
        emit_dma(t)
    for t in range(14):
        o.c("---- W tile %d ----" % t)
        vm_wait_for(lambda tg: tg[0] in ("xs", "x") or tg == ("dma", t))
        o("s_barrier")
        emit_dma(t + D)
        for b in range(4):
            o("v_add_u32 %s, %d, %s" % (vr(V_WCUR + b), stage_of(t), vr(V_WA + b)))
        for i in range(2):
            o("v_add_u32 %s, %d, %s" % (vr(V_WCUR + 4 + i), stage_of(t), vr(V_WSH + i)))
        for sp in range(2):
            s = 2 * t + sp
            xsb = V_XSB + 4 * sp
            o("v_xor_b32 %s, %d, %s" % (vr(V_T), (s & 7) << 5, vr(V_XS0)))
            o("ds_read_b128 %s, %s offset:%d" % (vr(xsb, 4), vr(V_T), 256 * (s >> 3)))
            items = []
            for mt in range(8):
                off0 = (16 * sp) * 512 + (mt >> 2) * 256
                rd = tr_reads(V_WCUR + (mt & 3), off0, off0 + 4 * 512)
                mm = (lambda mt=mt, s=s: (lambda slot: [mfma(V_ACC + 16 * mt, slot, A_X + 4 * s, 0 if s == 0 else None, bk="a")]))()
                items.append((rd, mm))
            for i in range(2):
                off0 = (16 * sp) * 512
                rd = tr_reads(V_WCUR + 4 + i, off0, off0 + 4 * 512)
                mm = (lambda i=i, s=s, xsb=xsb: (lambda slot: [mfma(V_ACC_SH + 16 * i, slot, xsb, 0 if s == 0 else None)]))()
                items.append((rd, mm))
            frag_stream(items)
    o("s_nop 15")
    o("s_nop 7")
    for mt in range(8):
        for i in range(8):
            src = V_ACC + 16 * mt + 2 * i
            o("v_cvt_pk_bf16_f32 %s, %s, %s" % (vr(V_QF_OWN + 8 * mt + i), vr(src), vr(src + 1)))
    for i2 in range(2):
        for i in range(8):
            src = V_ACC_SH + 16 * i2 + 2 * i
            o("v_cvt_pk_bf16_f32 %s, %s, %s" % (vr(V_ACC_SH + 8 * i2 + i), vr(src), vr(src + 1)))
    o("v_lshlrev_b32 %s, 4, %s" % (vr(V_T), vr(V_L)))
    o("v_add_u32 %s, %d, %s" % (vr(V_T), QSI, vr(V_T)))
    o("v_add_u32 %s, %s, %s" % (vr(V_T + 1), sr(S_W4096), vr(V_T)))
    for k in range(4):
        o("ds_write_b128 %s, %s offset:%d" % (vr(V_T + 1), vr(V_ACC_SH + 4 * k, 4), k * 1024))
    o("s_waitcnt lgkmcnt(0)")
    o("s_barrier")
    for ks in range(16):
        o("ds_read_b128 %s, %s offset:%d" % (vr(V_QF_SH + 4 * ks, 4), vr(V_T), ks * 1024))
        if ks % 8 == 7:
            o("s_waitcnt lgkmcnt(0)")


def emit_softmax(sreg, preg, vm, vl, aO, lab):
    t0, t1, t2 = V_X, V_X + 1, V_X + 2
    o("v_max3_f32 %s, %s, %s, %s" % (vr(t0), vr(sreg), vr(sreg + 1), vr(sreg + 2)))
    for i in range(3, 15, 2):
        o("v_max3_f32 %s, %s, %s, %s" % (vr(t0), vr(t0), vr(sreg + i), vr(sreg + i + 1)))
    o("v_max_f32 %s, %s, %s" % (vr(t0), vr(t0), vr(sreg + 15)))
    o("v_mov_b32 %s, %s" % (vr(t1), vr(t0)))
    o("s_nop 1")
    o("v_permlane32_swap_b32 %s, %s" % (vr(t0), vr(t1)))
    o("v_max_f32 %s, %s, %s" % (vr(t0), vr(t0), vr(t1)))
    o("v_mul_f32 %s, %s, %s" % (vr(t0), sr(S_C), vr(t0)))
    o("v_sub_f32 %s, %s, %s" % (vr(t1), vr(t0), vr(vm)))
    o("v_cmp_lt_f32 vcc, %s, %s" % (sr(S_T), vr(t1)))
    o("s_nop 0")
    o("s_cbranch_vccz %s" % lab)
    o("v_max_f32 %s, %s, %s" % (vr(t1), vr(vm), vr(t0)))
    o("v_sub_f32 %s, %s, %s" % (vr(t2), vr(vm), vr(t1)))
    o("v_exp_f32 %s, %s" % (vr(t2), vr(t2)))
    o("v_mov_b32 %s, %s" % (vr(vm), vr(t1)))
    o("s_nop 0")
    o("v_mul_f32 %s, %s, %s" % (vr(vl), vr(vl), vr(t2)))
    o("s_nop 15")
    for r in range(128):
        tt = V_X + 3 + (r % 4)
        o("v_accvgpr_read_b32 %s, %s" % (vr(tt), ar(aO + r)))
        o("v_mul_f32 %s, %s, %s" % (vr(tt), vr(tt), vr(t2)))
        o("v_accvgpr_write_b32 %s, %s" % (ar(aO + r), vr(tt)))
    o("s_nop 1")
    o.label(lab)
    for i in range(16):
        o("v_fma_f32 %s, %s, %s, -%s" % (vr(sreg + i), vr(sreg + i), sr(S_C), vr(vm)))
    for i in range(16):
        o("v_exp_f32 %s, %s" % (vr(sreg + i), vr(sreg + i)))
    o("s_nop 0")
    for i in range(16):
        o("v_add_f32 %s, %s, %s" % (vr(vl), vr(vl), vr(sreg + i)))
    for i in range(8):
        o("v_cvt_pk_bf16_f32 %s, %s, %s" % (vr(preg + i), vr(sreg + 2 * i), vr(sreg + 2 * i + 1)))
    o("s_nop 1")


def emit_S(active):
    items = []
    for s in range(16):
        rd = (lambda s=s: (lambda slot: ["ds_read_b128 %s, %s offset:%d" % (vr(slot, 4), vr(V_KA + (s & 7)), 256 * (s >> 3))]))()
        if active:
            mm = (lambda s=s: (lambda slot: [mfma(V_S_OWN, slot, V_QF_OWN + 4 * s, 0 if s == 0 else None),
                                             mfma(V_S_SH, slot, V_QF_SH + 4 * s, 0 if s == 0 else None)]))()
        else:
            mm = (lambda s=s: (lambda slot: [mfma(V_S_OWN, slot, V_QF_OWN + 4 * s, 0 if s == 0 else None)]))()
        items.append((rd, mm))
    frag_stream(items)
    o("s_nop 15")


def emit_PV(active):
    items = []
    for ks in range(2):
        for dt in range(8):
            off0 = (16 * ks) * 512 + (dt >> 2) * 256
            rd = tr_reads(V_VA + (dt & 3), off0, off0 + 8 * 512)
            if active:
                mm = (lambda ks=ks, dt=dt: (lambda slot: [mfma(A_O_OWN + 16 * dt, slot, V_P_OWN + 4 * ks, dk="a"),
                                                          mfma(A_O_SH + 16 * dt, slot, V_P_SH + 4 * ks, dk="a")]))()
            else:
                mm = (lambda ks=ks, dt=dt: (lambda slot: [mfma(A_O_OWN + 16 * dt, slot, V_P_OWN + 4 * ks, dk="a")]))()
            items.append((rd, mm))
    frag_stream(items)


def emit_attn_iter(dyn, j=None):
    lab = o.newlabel("LA")
    if dyn:
        o("s_waitcnt vmcnt(20)")
    else:
        vm_wait_for(lambda tg: tg == ("dma", 14 + 2 * j))
    o("s_barrier")
    if dyn:
        o("s_sub_u32 %s, %s, %d" % (sr(S_T0), sr(S_KST), STG))
        o("s_cmp_eq_u32 %s, 0" % sr(S_KST))
        o("s_cselect_b32 %s, %d, %s" % (sr(S_T0), RING - STG, sr(S_T0)))
        o("s_add_u32 %s, %s, %s" % (sr(S_T0), sr(S_T0), sr(S_W4096)))
        o("s_mov_b32 m0, %s" % sr(S_T0))
        o("s_nop 0")
        for u in range(4):
            o("buffer_load_dwordx4 %s, %s, %s offen offset:%d lds" % (vr(V_DK + u), sr(SRD_K, 4), sr(S_KPF), u * 1024))
    else:
        emit_dma(14 + 2 * j + D)
    act_lab, join_lab = o.newlabel("LACT"), o.newlabel("LJ")
    if dyn:
        o("s_and_b32 %s, %s, 3" % (sr(S_T0), sr(S_J)))
    else:
        o("s_mov_b32 %s, %d" % (sr(S_T0), j & 3))
    o("s_cmp_eq_u32 %s, %s" % (sr(S_T0), sr(S_W)))
    o("s_cselect_b32 %s, 1, 0" % sr(S_ACT))
    o("s_cbranch_scc1 %s" % act_lab)
    emit_S(False)
    emit_softmax(V_S_OWN, V_P_OWN, V_M_OWN, V_L_OWN, A_O_OWN, o.newlabel("LSK"))
    o("s_branch %s" % join_lab)
    o.label(act_lab)
    emit_S(True)
    emit_softmax(V_S_OWN, V_P_OWN, V_M_OWN, V_L_OWN, A_O_OWN, o.newlabel("LSK"))
    emit_softmax(V_S_SH, V_P_SH, V_M_SH, V_L_SH, A_O_SH, o.newlabel("LSK"))
    o.label(join_lab)
    if dyn:
        o("s_waitcnt vmcnt(20)")
    else:
        vm_wait_for(lambda tg: tg == ("dma", 15 + 2 * j))
    o("s_barrier")
    if dyn:
        o("s_add_u32 %s, %s, %s" % (sr(S_T0), sr(S_KST), sr(S_W4096)))
        o("s_mov_b32 m0, %s" % sr(S_T0))
        o("s_nop 0")
        for u in range(4):
            o("buffer_load_dwordx4 %s, %s, %s offen offset:%d lds" % (vr(V_DV + (u & 1)), sr(SRD_V, 4), sr(S_KPF), u * 1024))
    else:
        emit_dma(15 + 2 * j + D)
    act_lab, join_lab = o.newlabel("LACT"), o.newlabel("LJ")
    o("s_cmp_eq_u32 %s, 1" % sr(S_ACT))
    o("s_cbranch_scc1 %s" % act_lab)
    emit_PV(False)
    o("s_branch %s" % join_lab)
    o.label(act_lab)
    emit_PV(True)
    o.label(join_lab)


def advance_ring(dyn, kst_old=None, vst_old=None):
    if dyn:
        o("s_add_u32 %s, %s, %d" % (sr(S_T0), sr(S_VST), STG))
        o("s_cmp_ge_u32 %s, %d" % (sr(S_T0), RING))
        o("s_cselect_b32 %s, 0, %s" % (sr(S_T0), sr(S_T0)))
        o("s_add_u32 %s, %s, %d" % (sr(S_T1), sr(S_T0), STG))
        o("s_cmp_ge_u32 %s, %d" % (sr(S_T1), RING))
        o("s_cselect_b32 %s, 0, %s" % (sr(S_T1), sr(S_T1)))
        o("s_sub_u32 %s, %s, %s" % (sr(S_DK), sr(S_T0), sr(S_KST)))
        o("s_sub_u32 %s, %s, %s" % (sr(S_DV), sr(S_T1), sr(S_VST)))
        o("s_mov_b32 %s, %s" % (sr(S_KST), sr(S_T0)))
        o("s_mov_b32 %s, %s" % (sr(S_VST), sr(S_T1)))
        for i in range(8):
            o("v_add_u32 %s, %s, %s" % (vr(V_KA + i), sr(S_DK), vr(V_KA + i)))
        for i in range(4):
            o("v_add_u32 %s, %s, %s" % (vr(V_VA + i), sr(S_DV), vr(V_VA + i)))
        o("s_add_u32 %s, %s, %d" % (sr(S_KPF), sr(S_KPF), STG))
    else:
        kst = (vst_old + STG) % RING
        vst = (kst + STG) % RING
        dk, dv = kst - kst_old, vst - vst_old
        for i in range(8):
            o("v_add_u32 %s, %d, %s" % (vr(V_KA + i), dk & 0xffffffff, vr(V_KA + i)))
        for i in range(4):
            o("v_add_u32 %s, %d, %s" % (vr(V_VA + i), dv & 0xffffffff, vr(V_VA + i)))
        return kst, vst


def emit_attention():
    o.c("==== attention ====")
    o("v_mov_b32 %s, 0xf149f2ca" % vr(V_M_OWN))
    o("v_mov_b32 %s, 0xf149f2ca" % vr(V_M_SH))
    o("v_mov_b32 %s, 0" % vr(V_L_OWN))
    o("v_mov_b32 %s, 0" % vr(V_L_SH))
    for r in range(256):
        o("v_accvgpr_write_b32 %s, 0" % ar(r))
    kst, vst = stage_of(14), stage_of(15)
    for i in range(8):
        o("v_add_u32 %s, %d, %s" % (vr(V_KA + i), kst, vr(V_KA + i)))
    for i in range(4):
        o("v_add_u32 %s, %d, %s" % (vr(V_VA + i), vst, vr(V_VA + i)))
    NDYN = 13
    o("s_mov_b32 %s, 0" % sr(S_J))
    o("s_mov_b32 %s, %d" % (sr(S_KST), kst))
    o("s_mov_b32 %s, %d" % (sr(S_VST), vst))
    o("s_add_u32 %s, %s, %d" % (sr(S_KPF), sr(S_KVOFF), 3 * STG))
    o.label("L_attn_loop")
    emit_attn_iter(True)
    advance_ring(True)
    o("s_add_u32 %s, %s, 1" % (sr(S_J), sr(S_J)))
    o("s_cmp_lt_u32 %s, %d" % (sr(S_J), NDYN))
    o("s_cbranch_scc1 L_attn_loop")
    for t in range(14 + D, 14 + 2 * NDYN + D):
        for u in range(4):
            vm_issue(("dma", t))
    kst, vst = stage_of(14 + 2 * NDYN), stage_of(15 + 2 * NDYN)
    for j in range(NDYN, 16):
        emit_attn_iter(False, j)
        if j < 15:
            kst, vst = advance_ring(False, kst, vst)
    return vst


SCR = stage_of(45)


def emit_finalize():
    o.c("==== finalize ====")
    t0, t1, t2, t3 = V_X, V_X + 1, V_X + 2, V_X + 3
    vcomp = V_X + 4
    vl4 = V_X + 5
    vsc = V_X + 6
    o("s_barrier")
    for vl in (V_L_OWN, V_L_SH):
        o("v_mov_b32 %s, %s" % (vr(t0), vr(vl)))
        o("s_nop 1")
        o("v_permlane32_swap_b32 %s, %s" % (vr(vl), vr(t0)))
        o("v_add_f32 %s, %s, %s" % (vr(vl), vr(vl), vr(t0)))
    o("v_lshlrev_b32 %s, 2, %s" % (vr(vl4), vr(V_L)))
    o("v_add_u32 %s, %d, %s" % (vr(vl4), SCR, vr(vl4)))
    o("s_lshl_b32 %s, %s, 8" % (sr(S_T0), sr(S_W)))
    o("v_add_u32 %s, %s, %s" % (vr(t1), sr(S_T0), vr(vl4)))
    o("ds_write_b32 %s, %s" % (vr(t1), vr(V_M_SH)))
    o("ds_write_b32 %s, %s offset:1024" % (vr(t1), vr(V_L_SH)))
    o("v_rcp_f32 %s, %s" % (vr(t2), vr(V_L_OWN)))
    o("s_waitcnt lgkmcnt(0)")
    o("s_barrier")
    mreg, lreg = V_S_OWN, V_S_OWN + 4
    for w4 in range(4):
        o("ds_read_b32 %s, %s offset:%d" % (vr(mreg + w4), vr(vl4), w4 * 256))
        o("ds_read_b32 %s, %s offset:%d" % (vr(lreg + w4), vr(vl4), 1024 + w4 * 256))
    for dt in range(8):
        for i in range(8):
            a = A_O_OWN + 16 * dt + 2 * i
            o("v_accvgpr_read_b32 %s, %s" % (vr(t0), ar(a)))
            o("v_accvgpr_read_b32 %s, %s" % (vr(t1), ar(a + 1)))
            o("v_mul_f32 %s, %s, %s" % (vr(t0), vr(t0), vr(t2)))
            o("v_mul_f32 %s, %s, %s" % (vr(t1), vr(t1), vr(t2)))
            o("v_cvt_pk_bf16_f32 %s, %s, %s" % (vr(t0), vr(t0), vr(t1)))
            o("v_accvgpr_write_b32 %s, %s" % (ar(A_OF_OWN + 8 * dt + i), vr(t0)))
    o("s_waitcnt lgkmcnt(0)")
    o("v_max_f32 %s, %s, %s" % (vr(t0), vr(mreg), vr(mreg + 1)))
    o("v_max3_f32 %s, %s, %s, %s" % (vr(t0), vr(t0), vr(mreg + 2), vr(mreg + 3)))
    for w4 in range(4):
        o("v_sub_f32 %s, %s, %s" % (vr(mreg + w4), vr(mreg + w4), vr(t0)))
        o("v_exp_f32 %s, %s" % (vr(mreg + w4), vr(mreg + w4)))
    o("s_nop 0")
    o("v_mul_f32 %s, %s, %s" % (vr(t1), vr(mreg), vr(lreg)))
    for w4 in range(1, 4):
        o("v_fma_f32 %s, %s, %s, %s" % (vr(t1), vr(mreg + w4), vr(lreg + w4), vr(t1)))
    o("v_rcp_f32 %s, %s" % (vr(t1), vr(t1)))
    o("v_sub_f32 %s, %s, %s" % (vr(t3), vr(V_M_SH), vr(t0)))
    o("v_exp_f32 %s, %s" % (vr(t3), vr(t3)))
    o("s_nop 0")
    o("v_mul_f32 %s, %s, %s" % (vr(vsc), vr(t3), vr(t1)))
    o("s_barrier")
    o("v_and_b32 %s, 15, %s" % (vr(vcomp), vr(V_L)))
    o("v_lshrrev_b32 %s, 5, %s" % (vr(t0), vr(V_L)))
    o("v_lshl_add_u32 %s, %s, 4, %s" % (vr(vcomp), vr(t0), vr(vcomp)))
    o("v_lshlrev_b32 %s, 4, %s" % (vr(vcomp), vr(vcomp)))
    o("s_mov_b32 exec_lo, 0xffff")
    o("s_mov_b32 exec_hi, 0xffff")
    bases = [MISC, MISC + 16384, MISC + 32768, SCR]
    for w2 in range(4):
        o("s_add_u32 %s, %s, %d" % (sr(S_T0), sr(S_W4096), bases[w2]))
        o("v_add_u32 %s, %s, %s" % (vr(t0), sr(S_T0), vr(vcomp)))
        for g in range(8):
            for k in range(4):
                a = A_O_SH + (2 * w2) * 16 + 4 * g + k
                o("v_accvgpr_read_b32 %s, %s" % (vr(V_AB + k), ar(a)))
                o("v_mul_f32 %s, %s, %s" % (vr(V_AB + k), vr(V_AB + k), vr(vsc)))
            o("ds_write_b128 %s, %s offset:%d" % (vr(t0), vr(V_AB, 4), g * 512))
    o("s_waitcnt lgkmcnt(0)")
    o("s_barrier")
    o("s_mov_b32 %s, %d" % (sr(S_T0), SCR))
    o("s_mul_i32 %s, %s, 16384" % (sr(S_T1), sr(S_W)))
    o("s_add_u32 %s, %s, %d" % (sr(S_T1), sr(S_T1), MISC))
    o("s_cmp_lt_u32 %s, 3" % sr(S_W))
    o("s_cselect_b32 %s, %s, %s" % (sr(S_T0), sr(S_T1), sr(S_T0)))
    o("v_add_u32 %s, %s, %s" % (vr(t0), sr(S_T0), vr(vcomp)))
    dst = V_S_OWN
    for g in range(8):
        for src in range(4):
            o("ds_read_b128 %s, %s offset:%d" % (vr(V_AB + 4 * src, 4), vr(t0), src * 4096 + g * 512))
        o("s_waitcnt lgkmcnt(0)")
        for k in range(4):
            o("v_add_f32 %s, %s, %s" % (vr(dst + 4 * g + k), vr(V_AB + k), vr(V_AB + 4 + k)))
            o("v_add_f32 %s, %s, %s" % (vr(V_AB + 8 + k), vr(V_AB + 8 + k), vr(V_AB + 12 + k)))
            o("v_add_f32 %s, %s, %s" % (vr(dst + 4 * g + k), vr(dst + 4 * g + k), vr(V_AB + 8 + k)))
    o("s_mov_b64 exec, -1")
    for i in range(16):
        o("v_cvt_pk_bf16_f32 %s, %s, %s" % (vr(dst + i), vr(dst + 2 * i), vr(dst + 2 * i + 1)))
    o("s_barrier")
    o("v_lshlrev_b32 %s, 4, %s" % (vr(t0), vr(V_L)))
    o("v_add_u32 %s, %d, %s" % (vr(t0), MISC, vr(t0)))
    o("v_add_u32 %s, %s, %s" % (vr(t1), sr(S_W4096), vr(t0)))
    for k in range(4):
        o("ds_write_b128 %s, %s offset:%d" % (vr(t1), vr(dst + 4 * k, 4), k * 1024))
    o("s_waitcnt lgkmcnt(0)")
    o("s_barrier")
    for ks in range(16):
        o("ds_read_b128 %s, %s offset:%d" % (ar(A_OF_SH + 4 * ks, 4), vr(t0), ks * 1024))
        if ks % 8 == 7:
            o("s_waitcnt lgkmcnt(0)")


def emit_outproj(vst_cur):
    o.c("==== output projection (per-head partial) ====")
    for cb in range(2):
        if cb == 0:
            o("s_lshl_b32 %s, %s, 1" % (sr(S_MT0), sr(S_W)))
            o("s_add_u32 %s, %s, 1" % (sr(S_MT1), sr(S_MT0)))
        else:
            o("s_lshl_b32 %s, %s, 1" % (sr(S_T0), sr(S_W)))
            o("s_add_u32 %s, %s, 1" % (sr(S_T1), sr(S_T0)))
            o("s_add_u32 %s, %s, 2" % (sr(S_T2), sr(S_W)))
            o("s_cmp_lt_u32 %s, 2" % sr(S_W))
            o("s_cselect_b32 %s, %s, %s" % (sr(S_MT0), sr(S_T0), sr(S_T2)))
            o("s_cselect_b32 %s, %s, %s" % (sr(S_MT1), sr(S_T1), sr(S_T2)))
        o("v_subrev_u32 %s, %d, %s" % (vr(V_T), vst_cur, vr(V_VA)))
        for i2, smt in enumerate((S_MT0, S_MT1)):
            o("s_and_b32 %s, %s, 3" % (sr(S_T0), sr(smt)))
            o("s_lshl_b32 %s, %s, 6" % (sr(S_T0), sr(S_T0)))
            o("s_lshr_b32 %s, %s, 2" % (sr(S_T1), sr(smt)))
            o("s_lshl_b32 %s, %s, 8" % (sr(S_T1), sr(S_T1)))
            o("v_xor_b32 %s, %s, %s" % (vr(V_WA + i2), sr(S_T0), vr(V_T)))
            o("v_add_u32 %s, %s, %s" % (vr(V_WA + i2), sr(S_T1), vr(V_WA + i2)))
        nmt = 8 if cb == 0 else 6
        for di in range(8):
            t = 46 + cb * 8 + di
            o.c("---- wo tile %d ----" % (t - 46))
            vm_wait_for(lambda tg: tg == ("dma", t))
            o("s_barrier")
            emit_dma(t + D)
            st = stage_of(t)
            dv = (st - vst_cur) & 0xffffffff
            for i in range(4):
                o("v_add_u32 %s, %d, %s" % (vr(V_VA + i), dv, vr(V_VA + i)))
            vst_cur = st
            for i2 in range(2):
                o("v_add_u32 %s, %d, %s" % (vr(V_WSH + i2), st, vr(V_WA + i2)))
            items = []
            for tt in range(2):
                ks = 2 * di + tt
                first = (di == 0 and tt == 0)
                for mt in range(nmt):
                    off0 = (16 * tt) * 512 + (mt >> 2) * 256
                    rd = tr_reads(V_VA + (mt & 3), off0, off0 + 8 * 512)
                    mm = (lambda mt=mt, ks=ks, first=first: (lambda slot: [mfma(V_ACC + 16 * mt, slot, A_OF_OWN + 4 * ks, 0 if first else None, bk="a")]))()
                    items.append((rd, mm))
                for i2 in range(2):
                    off0 = (16 * tt) * 512
                    rd = tr_reads(V_WSH + i2, off0, off0 + 8 * 512)
                    mm = (lambda i2=i2, ks=ks, first=first: (lambda slot: [mfma(V_ACC_SH + 16 * i2, slot, A_OF_SH + 4 * ks, 0 if first else None, bk="a")]))()
                    items.append((rd, mm))
            frag_stream(items)
        o("s_nop 15")
        o("s_nop 7")
        o("v_lshlrev_b32 %s, 4, %s" % (vr(V_T), vr(V_L)))
        o("s_mul_i32 %s, %s, %d" % (sr(S_T2), sr(S_W), 28 * 1024))
        o("s_add_u32 %s, %s, %s" % (sr(S_T2), sr(S_T2), sr(S_PIDX)))
        for mt in range(nmt):
            for rp in range(2):
                src = V_ACC + 16 * mt + 8 * rp
                for i in range(4):
                    o("v_cvt_pk_bf16_f32 %s, %s, %s" % (vr(src + i), vr(src + 2 * i), vr(src + 2 * i + 1)))
                o("s_add_u32 %s, %s, %d" % (sr(S_T0), sr(S_T2), ((cb * 8 + mt) * 2 + rp) * 1024))
                o("buffer_store_dwordx4 %s, %s, %s, %s offen" % (vr(src, 4), vr(V_T), sr(SRD_WS, 4), sr(S_T0)))
                vm_issue(("st", cb, mt, rp))
        for i2, smt in enumerate((S_MT0, S_MT1)):
            for rp in range(2):
                src = V_ACC_SH + 16 * i2 + 8 * rp
                for i in range(4):
                    o("v_cvt_pk_bf16_f32 %s, %s, %s" % (vr(src + i), vr(src + 2 * i), vr(src + 2 * i + 1)))
                o("s_lshl_b32 %s, %s, 11" % (sr(S_T0), sr(smt)))
                o("s_add_u32 %s, %s, %d" % (sr(S_T0), sr(S_T0), 114688 + (cb * 16 + rp) * 1024))
                o("s_add_u32 %s, %s, %s" % (sr(S_T0), sr(S_T0), sr(S_PIDX)))
                o("buffer_store_dwordx4 %s, %s, %s, %s offen" % (vr(src, 4), vr(V_T), sr(SRD_WS, 4), sr(S_T0)))
                vm_issue(("st", cb, "s", i2, rp))


def emit_reduce_kernel():
    r = Asm()
    r.label("reduce_kernel")
    r("s_load_dwordx2 s[4:5], s[0:1], 96")
    r("s_load_dwordx2 s[6:7], s[0:1], 80")
    r("v_lshrrev_b32 v1, 6, v0")
    r("v_and_b32 v2, 63, v0")
    r("s_nop 1")
    r("v_readfirstlane_b32 s3, v1")
    r("s_lshl_b32 s8, s2, 2")
    r("s_add_u32 s8, s8, s3")
    r("s_cmp_ge_u32 s8, 2240")
    r("s_cbranch_scc1 L_rend")
    r("s_mul_i32 s9, s8, 7490")
    r("s_lshr_b32 s9, s9, 20")
    r("s_mul_i32 s10, s9, 140")
    r("s_sub_u32 s10, s8, s10")
    r("s_waitcnt lgkmcnt(0)")
    r("s_mov_b32 s12, s4")
    r("s_and_b32 s13, s5, 0xffff")
    r("s_mov_b32 s14, 268435456")
    r("s_mov_b32 s15, 0x20000")
    r("s_mov_b32 s16, s6")
    r("s_and_b32 s17, s7, 0xffff")
    r("s_mov_b32 s18, %d" % (8 * 144 * 896 * 2))
    r("s_mov_b32 s19, 0x20000")
    r("s_mul_i32 s11, s9, %d" % (16 * PART_BYTES))
    r("s_lshl_b32 s20, s10, 10")
    r("s_add_u32 s11, s11, s20")
    r("v_lshlrev_b32 v3, 4, v2")
    for h in range(16):
        r("buffer_load_dwordx4 v[%d:%d], v3, s[12:15], s11 offen" % (16 + 4 * h, 19 + 4 * h))
        if h < 15:
            r("s_add_u32 s11, s11, %d" % PART_BYTES)
    for k in range(8):
        r("v_mov_b32 v%d, 0" % (4 + k))
    for h in range(16):
        r("s_waitcnt vmcnt(%d)" % (15 - h))
        for k in range(4):
            src = 16 + 4 * h + k
            r("v_lshlrev_b32 v12, 16, v%d" % src)
            r("v_and_b32 v13, 0xffff0000, v%d" % src)
            r("v_add_f32 v%d, v%d, v12" % (4 + 2 * k, 4 + 2 * k))
            r("v_add_f32 v%d, v%d, v13" % (5 + 2 * k, 5 + 2 * k))
    for k in range(4):
        r("v_cvt_pk_bf16_f32 v%d, v%d, v%d" % (4 + k, 4 + 2 * k, 5 + 2 * k))
    r("s_and_b32 s21, s9, 7")
    r("s_lshr_b32 s22, s9, 3")
    r("s_cmp_ge_u32 s10, 112")
    r("s_cbranch_scc1 L_rsh")
    r("s_mul_i32 s23, s10, 9363")
    r("s_lshr_b32 s23, s23, 18")
    r("s_mul_i32 s24, s23, 28")
    r("s_sub_u32 s24, s10, s24")
    r("s_lshl_b32 s23, s23, 5")
    r("s_branch L_rjoin")
    r.label("L_rsh")
    r("s_sub_u32 s24, s10, 112")
    r("s_movk_i32 s23, 128")
    r("v_and_b32 v12, 31, v2")
    r("v_cmp_gt_u32 vcc, 16, v12")
    r("s_and_b64 exec, exec, vcc")
    r.label("L_rjoin")
    r("s_lshl_b32 s25, s24, 4")
    r("s_mul_i32 s26, s22, 448")
    r("s_add_u32 s25, s25, s26")
    r("s_mul_i32 s26, s21, 144")
    r("s_add_u32 s26, s26, s23")
    r("v_and_b32 v12, 31, v2")
    r("v_add_u32 v12, s26, v12")
    r("s_movk_i32 s27, 896")
    r("v_mul_u32_u24 v12, v12, s27")
    r("v_lshrrev_b32 v13, 5, v2")
    r("v_lshl_add_u32 v12, v13, 2, v12")
    r("v_add_u32 v12, s25, v12")
    r("v_lshlrev_b32 v12, 1, v12")
    r("buffer_store_dwordx2 v[4:5], v12, s[16:19], 0 offen")
    r("buffer_store_dwordx2 v[6:7], v12, s[16:19], 0 offen offset:16")
    r.label("L_rend")
    r("s_endpgm")
    return r.text()


def main():
    hdr = open("concat_heads__mha_block_cached__mha_block_cached__near_ridge.s.ref").read().split(".amdgcn_target")[0]
    hdr_lines = [ln for ln in hdr.splitlines() if "@launch" not in ln and not ln.startswith("; Override") and not ln.startswith("; grid=ceil")]
    emit_prologue()
    emit_qproj()
    if DBG == 1:
        dbg_dump(list(range(V_QF_OWN, V_QF_OWN + 64)) + list(range(V_QF_SH, V_QF_SH + 64)))
        o("s_branch L_end")
    vst = emit_attention()
    if DBG == 2:
        dbg_dump([V_M_OWN, V_L_OWN, V_M_SH, V_L_SH])
        dbg_dump(list(range(256)), kind="a", base=4)
        o("s_branch L_end")
    emit_finalize()
    if DBG == 3:
        dbg_dump(list(range(256)), kind="a")
        o("s_branch L_end")
    emit_outproj(vst)
    o.label("L_end")
    o("s_endpgm")
    body = o.text()
    out = "\n".join(hdr_lines) + "\n"
    out += "; @launch kernel=%s grid=(256,1,1) block=(256,1,1) lds=%d\n" % (KNAME, LDS_TOTAL)
    out += "; @launch kernel=reduce_kernel grid=(560,1,1) block=(256,1,1) lds=0\n"
    out += '.amdgcn_target "amdgcn-amd-amdhsa--gfx950"\n.text\n.globl %s\n.p2align 8\n.type %s,@function\n%s:\n' % (KNAME, KNAME, KNAME)
    out += body
    out += ".p2align 8\n" + emit_reduce_kernel()
    out += '''.section .rodata,"a"
.p2align 6
.amdhsa_kernel %s
  .amdhsa_next_free_vgpr 512
  .amdhsa_next_free_sgpr 102
  .amdhsa_accum_offset 256
  .amdhsa_group_segment_fixed_size 0
  .amdhsa_kernarg_size 104
  .amdhsa_user_sgpr_count 2
  .amdhsa_user_sgpr_kernarg_segment_ptr 1
  .amdhsa_system_sgpr_workgroup_id_x 1
.end_amdhsa_kernel
.p2align 6
.amdhsa_kernel reduce_kernel
  .amdhsa_next_free_vgpr 80
  .amdhsa_next_free_sgpr 32
  .amdhsa_accum_offset 80
  .amdhsa_group_segment_fixed_size 0
  .amdhsa_kernarg_size 104
  .amdhsa_user_sgpr_count 2
  .amdhsa_user_sgpr_kernarg_segment_ptr 1
  .amdhsa_system_sgpr_workgroup_id_x 1
.end_amdhsa_kernel
''' % KNAME
    open("concat_heads__mha_block_cached__mha_block_cached__near_ridge.s", "w").write(out)


main()
```

```python
import sys, os
NO_DMA = os.environ.get("NO_DMA") == "1"
NO_MFMA = os.environ.get("NO_MFMA") == "1"
NO_LDSR = os.environ.get("NO_LDSR") == "1"

KNAME = "concat_heads__mha_block_cached__mha_block_cached__near_ridge_kernel"
DBG = int(sys.argv[1]) if len(sys.argv) > 1 else 0

R = 7
D = 6
STG = 16384
RING = R * STG
MISC = RING
XS = MISC
QSI = MISC + 16384
LDS_TOTAL = 163840
NT = 62
PART_BYTES = 143360
DBG_OFF = 64 * 1024 * 1024


class Asm:
    def __init__(self):
        self.lines = []
        self.uid = 0

    def __call__(self, s):
        if NO_DMA and s.endswith(" lds"):
            return
        if NO_MFMA and s.startswith("v_mfma"):
            return
        if NO_LDSR and (s.startswith("ds_read_b64_tr") or s.startswith("ds_read_b128")):
            return
        self.lines.append("    " + s)

    def label(self, s):
        self.lines.append(s + ":")

    def c(self, s):
        self.lines.append("    ; " + s)

    def newlabel(self, p="L"):
        self.uid += 1
        return "%s_%d" % (p, self.uid)

    def text(self):
        return "\n".join(self.lines) + "\n"


def vr(i, n=1):
    return "v%d" % i if n == 1 else "v[%d:%d]" % (i, i + n - 1)


def ar(i, n=1):
    return "a%d" % i if n == 1 else "a[%d:%d]" % (i, i + n - 1)


def sr(i, n=1):
    return "s%d" % i if n == 1 else "s[%d:%d]" % (i, i + n - 1)


o = Asm()

S_BLK, S_B, S_H, S_W = 4, 5, 6, 7
SRD_X, SRD_K, SRD_V, SRD_WQ, SRD_WO, SRD_WS = 8, 12, 16, 20, 24, 28
S_W4096, S_C, S_T, S_XOFF, S_KVOFF, S_WQOFF, S_WOOFF, S_PIDX = 32, 33, 34, 35, 36, 37, 38, 39
S_J, S_KST, S_VST, S_T0, S_T1, S_T2, S_DK, S_DV, S_KPF = 40, 41, 42, 43, 44, 45, 46, 47, 48
S_ACT = 49
S_ACTN = 50
S_PTR = 52
S_MT0, S_MT1 = 66, 67
V_TID, V_L = 0, 1
V_T = 2
V_KA = 10
V_VA = 18
V_DK = 22
V_DV = 26
V_DO = 28
V_M_OWN, V_L_OWN, V_M_SH, V_L_SH = 32, 33, 34, 35
V_DW = 36
V_AB = 40
NAB = 8
LOOK = NAB - 1
V_S = [72, 88]
V_S_SH = 104
V_QF_OWN, V_QF_SH = 128, 192
V_ACC = 128
V_ACC_SH = 72
V_XSB = 104
V_WLO, V_WHI = 112, 116
V_WSLO, V_WSHI = 120, 122
V_XS0, V_XOFF = 124, 125
V_XD = 126
A_XOB = 0
XB = [MISC + 16384, MISC + 32768]
V_VLO, V_VHI = 112, 116
A_X = 0
A_O_OWN, A_O_SH = 0, 128
A_OF_OWN, A_OF_SH = 0, 128

vm_queue = []


def vm_issue(tag):
    vm_queue.append(tag)


def vm_wait_for(tag_pred):
    last = -1
    for i, t in enumerate(vm_queue):
        if tag_pred(t):
            last = i
    n = len(vm_queue) - 1 - last
    assert n <= 63
    o("s_waitcnt vmcnt(%d)" % n)


def stage_of(t):
    return (t % R) * STG


NSTAMP = 0


def stamp():
    global NSTAMP
    if DBG != 9:
        return
    o("s_memtime s[96:97]")
    o("s_waitcnt lgkmcnt(0)")
    o("s_mov_b32 s%d, s96" % (70 + NSTAMP))
    NSTAMP += 1


def stamp_dump():
    if DBG != 9:
        return
    o("s_waitcnt vmcnt(0)")
    o("s_mul_i32 %s, s2, 4" % sr(S_T0))
    o("s_add_u32 %s, %s, %s" % (sr(S_T0), sr(S_T0), sr(S_W)))
    o("s_mul_i32 %s, %s, 128" % (sr(S_T0), sr(S_T0)))
    o("s_add_u32 %s, %s, %d" % (sr(S_T0), sr(S_T0), DBG_OFF))
    o("v_mov_b32 %s, 0" % vr(V_T + 1))
    for i in range(NSTAMP):
        o("v_mov_b32 %s, s%d" % (vr(V_T), 70 + i))
        o("buffer_store_dword %s, %s, %s, %s offen offset:%d" % (vr(V_T), vr(V_T + 1), sr(SRD_WS, 4), sr(S_T0), 4 * i))
    o("s_waitcnt vmcnt(0)")


def dbg_dump(regs, kind="v", base=0):
    o.c("DEBUG DUMP")
    o("s_waitcnt vmcnt(0) lgkmcnt(0)")
    o("s_nop 15")
    o("s_mul_i32 %s, s2, %d" % (sr(S_T0), 4 * 512 * 256))
    o("s_add_u32 %s, %s, %d" % (sr(S_T0), sr(S_T0), DBG_OFF))
    o("s_mul_i32 %s, %s, %d" % (sr(S_T1), sr(S_W), 512 * 256))
    o("s_add_u32 %s, %s, %s" % (sr(S_T0), sr(S_T0), sr(S_T1)))
    o("v_lshlrev_b32 %s, 2, %s" % (vr(V_T), vr(V_L)))
    for idx, rg in enumerate(regs):
        idx2 = idx + base
        o("s_add_u32 %s, %s, %d" % (sr(S_T1), sr(S_T0), idx2 * 256))
        if kind == "v":
            o("buffer_store_dword %s, %s, %s, %s offen" % (vr(rg), vr(V_T), sr(SRD_WS, 4), sr(S_T1)))
        else:
            o("buffer_store_dword %s, %s, %s, %s offen" % (ar(rg), vr(V_T), sr(SRD_WS, 4), sr(S_T1)))
    o("s_waitcnt vmcnt(0)")


def emit_prologue():
    o("s_cmp_lt_u32 s2, 256")
    o("s_cbranch_scc1 L_start")
    o("s_endpgm")
    o.label("L_start")
    o("s_and_b32 %s, s2, 15" % sr(S_H))
    o("s_lshr_b32 %s, s2, 4" % sr(S_B))
    o("s_and_b32 %s, %s, 7" % (sr(S_B), sr(S_B)))
    o("s_lshr_b32 %s, s2, 7" % sr(S_BLK))
    o("s_mul_i32 %s, %s, 40" % (sr(S_T0), sr(S_BLK)))
    o("s_add_u32 s64, s0, %s" % sr(S_T0))
    o("s_addc_u32 s65, s1, 0")
    o("s_load_dwordx8 s[52:59], s[64:65], 0")
    o("s_load_dwordx2 s[60:61], s[64:65], 32")
    o("s_load_dwordx2 s[62:63], s[0:1], 96")
    o("v_lshrrev_b32 %s, 6, v0" % vr(V_T))
    o("v_and_b32 %s, 63, v0" % vr(V_L))
    o("s_nop 1")
    o("v_readfirstlane_b32 %s, %s" % (sr(S_W), vr(V_T)))
    o("s_lshl_b32 %s, %s, 12" % (sr(S_W4096), sr(S_W)))
    o("s_mov_b32 %s, 0x3db8aa3b" % sr(S_C))
    o("s_mov_b32 %s, 0x41000000" % sr(S_T))
    o("s_lshl_b32 %s, %s, 4" % (sr(S_T0), sr(S_B)))
    o("s_or_b32 %s, %s, %s" % (sr(S_T0), sr(S_T0), sr(S_H)))
    o("s_lshl_b32 %s, %s, 18" % (sr(S_KVOFF), sr(S_T0)))
    if os.environ.get("SAME_KV") == "1":
        o("s_mov_b32 %s, 0" % sr(S_KVOFF))
    o("s_lshl_b32 %s, %s, 7" % (sr(S_T1), sr(S_BLK)))
    o("s_or_b32 %s, %s, %s" % (sr(S_T1), sr(S_T1), sr(S_T0)))
    o("s_mul_i32 %s, %s, %d" % (sr(S_PIDX), sr(S_T1), PART_BYTES))
    o("s_lshl_b32 %s, %s, 9" % (sr(S_WQOFF), sr(S_H)))
    o("s_mul_i32 %s, %s, %d" % (sr(S_WOOFF), sr(S_H), 256 * 896))
    o("s_mul_i32 %s, %s, %d" % (sr(S_XOFF), sr(S_B), 144 * 896))
    l31, hh, l15, r_, c_, g1 = V_T, V_T + 1, V_T + 2, V_T + 3, V_T + 4, V_T + 5
    t6, t7 = V_T + 6, V_T + 7
    x0, x1, x2, x3 = V_AB, V_AB + 1, V_AB + 2, V_AB + 3
    o("v_and_b32 %s, 31, %s" % (vr(l31), vr(V_L)))
    o("v_lshrrev_b32 %s, 5, %s" % (vr(hh), vr(V_L)))
    o("v_and_b32 %s, 15, %s" % (vr(l15), vr(V_L)))
    o("v_bfe_u32 %s, %s, 2, 2" % (vr(r_), vr(V_L)))
    o("v_and_b32 %s, 3, %s" % (vr(c_), vr(V_L)))
    o("v_bfe_u32 %s, %s, 4, 1" % (vr(g1), vr(V_L)))
    o("v_xor_b32 %s, %s, %s" % (vr(t6), vr(hh), vr(l15)))
    o("v_lshlrev_b32 %s, 4, %s" % (vr(t6), vr(t6)))
    o("v_lshl_add_u32 %s, %s, 9, %s" % (vr(V_KA), vr(l31), vr(t6)))
    o("v_lshl_add_u32 %s, %s, 10, %s" % (vr(V_XS0), vr(l15), vr(t6)))
    o("v_add_u32 %s, %d, %s" % (vr(V_XS0), XS, vr(V_XS0)))
    o("v_lshl_add_u32 %s, %s, 2, %s" % (vr(t6), vr(hh), vr(r_)))
    o("v_lshlrev_b32 %s, 9, %s" % (vr(t6), vr(t6)))
    o("v_lshlrev_b32 %s, 6, %s" % (vr(t7), vr(r_)))
    o("v_lshl_add_u32 %s, %s, 5, %s" % (vr(t7), vr(g1), vr(t7)))
    o("v_add_u32 %s, %s, %s" % (vr(t6), vr(t6), vr(t7)))
    o("v_lshrrev_b32 %s, 1, %s" % (vr(x0), vr(c_)))
    o("v_and_b32 %s, 1, %s" % (vr(x1), vr(c_)))
    o("v_lshl_add_u32 %s, %s, 4, %s" % (vr(V_VA), vr(x0), vr(t6)))
    o("v_lshl_add_u32 %s, %s, 3, %s" % (vr(V_VA), vr(x1), vr(V_VA)))
    o("v_lshl_add_u32 %s, %s, 3, %s" % (vr(t6), vr(hh), vr(r_)))
    o("v_lshlrev_b32 %s, 9, %s" % (vr(t6), vr(t6)))
    o("v_add_u32 %s, %s, %s" % (vr(t6), vr(t6), vr(t7)))
    o("v_lshl_add_u32 %s, %s, 4, %s" % (vr(V_WLO), vr(x1), vr(t6)))
    o("v_lshl_add_u32 %s, %s, 3, %s" % (vr(V_WLO), vr(x0), vr(V_WLO)))
    for b in range(1, 4):
        o("v_xor_b32 %s, %d, %s" % (vr(V_WLO + b), b << 6, vr(V_WLO)))
        o("v_xor_b32 %s, %d, %s" % (vr(V_VA + b), b << 6, vr(V_VA)))
    for b in range(4):
        o("v_add_u32 %s, 0x10000, %s" % (vr(V_WHI + b), vr(V_WLO + b)))
    for s in range(1, 8):
        o("v_xor_b32 %s, %d, %s" % (vr(V_KA + s), s << 5, vr(V_KA)))
    for i in range(2):
        o("s_lshl_b32 %s, %s, 1" % (sr(S_T0), sr(S_W)))
        o("s_add_u32 %s, %s, %d" % (sr(S_T0), sr(S_T0), i))
        o("s_and_b32 %s, %s, 3" % (sr(S_T1), sr(S_T0)))
        o("s_lshl_b32 %s, %s, 6" % (sr(S_T1), sr(S_T1)))
        o("s_lshr_b32 %s, %s, 2" % (sr(S_T0), sr(S_T0)))
        o("s_lshl_b32 %s, %s, 8" % (sr(S_T0), sr(S_T0)))
        o("v_xor_b32 %s, %s, %s" % (vr(V_WSLO + i), sr(S_T1), vr(V_WLO)))
        o("v_add_u32 %s, %s, %s" % (vr(V_WSLO + i), sr(S_T0), vr(V_WSLO + i)))
        o("v_add_u32 %s, 0x10000, %s" % (vr(V_WSHI + i), vr(V_WSLO + i)))
    sw0, sw1 = x2, x3
    o("v_lshlrev_b32 %s, 2, %s" % (vr(t6), vr(hh)))
    o("v_xor_b32 %s, %s, %s" % (vr(sw0), vr(l31), vr(t6)))
    o("v_xor_b32 %s, 8, %s" % (vr(sw1), vr(sw0)))
    o("v_lshlrev_b32 %s, 4, %s" % (vr(sw0), vr(sw0)))
    o("v_lshlrev_b32 %s, 4, %s" % (vr(sw1), vr(sw1)))
    o("s_lshl_b32 %s, %s, 3" % (sr(S_T0), sr(S_W)))
    o("v_add_u32 %s, %s, %s" % (vr(t6), sr(S_T0), vr(hh)))
    for p in range(2):
        o("v_lshl_add_u32 %s, %s, 9, %s" % (vr(V_DV + p), vr(t6), vr(sw0 + p)))
    for u in range(4):
        o("v_add_u32 %s, %d, %s" % (vr(t7), 2 * u, vr(t6)))
        o("v_lshl_add_u32 %s, %s, 13, %s" % (vr(V_DW + u), vr(t7), vr(sw0 + (u & 1))))
        if u:
            o("v_subrev_u32 %s, %d, %s" % (vr(V_DW + u), 1024 * u, vr(V_DW + u)))
        o("s_movk_i32 %s, 896" % sr(S_T1))
        o("v_mad_u32_u24 %s, %s, %s, %s" % (vr(V_DO + u), vr(t7), sr(S_T1), vr(sw0 + (u & 1))))
        if u:
            o("v_subrev_u32 %s, %d, %s" % (vr(V_DO + u), 1024 * u, vr(V_DO + u)))
        o("s_and_b32 %s, %s, 1" % (sr(S_T1), sr(S_W)))
        o("s_lshl_b32 %s, %s, 3" % (sr(S_T1), sr(S_T1)))
        o("s_add_u32 %s, %s, %d" % (sr(S_T1), sr(S_T1), 2 * u))
        o("v_add_u32 %s, %s, %s" % (vr(t7), sr(S_T1), vr(hh)))
        o("v_xor_b32 %s, %s, %s" % (vr(t7), vr(l31), vr(t7)))
        o("v_lshlrev_b32 %s, 4, %s" % (vr(t7), vr(t7)))
        o("v_lshl_add_u32 %s, %s, 9, %s" % (vr(V_DK + u), vr(t6), vr(t7)))
    o("v_lshrrev_b32 %s, 3, %s" % (vr(t6), vr(V_L)))
    o("v_lshrrev_b32 %s, 1, %s" % (vr(t7), vr(t6)))
    o("v_and_b32 %s, 7, %s" % (vr(x0), vr(V_L)))
    o("v_xor_b32 %s, %s, %s" % (vr(x0), vr(x0), vr(t7)))
    o("v_xor_b32 %s, 4, %s" % (vr(x1), vr(x0)))
    o("v_lshlrev_b32 %s, 4, %s" % (vr(x0), vr(x0)))
    o("v_lshlrev_b32 %s, 4, %s" % (vr(x1), vr(x1)))
    o("s_movk_i32 %s, 896" % sr(S_T1))
    o("v_mad_u32_u24 %s, %s, %s, %s" % (vr(V_XD), vr(t6), sr(S_T1), vr(x0)))
    o("v_mad_u32_u24 %s, %s, %s, %s" % (vr(V_XD + 1), vr(t6), sr(S_T1), vr(x1)))
    o("v_bfe_u32 %s, %s, 1, 3" % (vr(t7), vr(l31)))
    o("v_xor_b32 %s, %s, %s" % (vr(t7), vr(t7), vr(hh)))
    o("v_lshlrev_b32 %s, 4, %s" % (vr(t7), vr(t7)))
    o("v_lshl_add_u32 %s, %s, 7, %s" % (vr(V_XOFF), vr(l31), vr(t7)))
    o("v_add_u32 %s, %s, %s" % (vr(V_XOFF), sr(S_W4096), vr(V_XOFF)))
    o("s_waitcnt lgkmcnt(0)")
    sizes = [(SRD_X, 52, 8 * 144 * 448 * 2), (SRD_K, 54, 8 * 16 * 512 * 256 * 2), (SRD_V, 56, 8 * 16 * 512 * 256 * 2),
             (SRD_WQ, 58, 448 * 4096 * 2), (SRD_WO, 60, 4096 * 448 * 2), (SRD_WS, 62, 268435456)]
    for srd, p, sz in sizes:
        o("s_mov_b32 %s, %s" % (sr(srd), sr(p)))
        o("s_and_b32 %s, %s, 0xffff" % (sr(srd + 1), sr(p + 1)))
        o("s_mov_b32 %s, %d" % (sr(srd + 2), sz))
        o("s_mov_b32 %s, 0x20000" % sr(srd + 3))


def tile_kind(t):
    if t < 14:
        return ("W", t)
    if t < 46:
        if t == 14:
            return ("K", 0)
        if t == 45:
            return ("V", 15)
        q = t - 15
        return ("K", q // 2 + 1) if q % 2 == 0 else ("V", q // 2)
    return ("O", t - 46)


def emit_dma(t):
    if t >= NT:
        return
    kind, i = tile_kind(t)
    o("s_add_u32 %s, %s, %d" % (sr(S_T0), sr(S_W4096), stage_of(t)))
    o("s_mov_b32 m0, %s" % sr(S_T0))
    if kind == "W":
        o("s_add_u32 %s, %s, %d" % (sr(S_T1), sr(S_WQOFF), i * 32 * 8192))
        srd, voff = SRD_WQ, [V_DW + u for u in range(4)]
    elif kind == "K":
        o("s_add_u32 %s, %s, %d" % (sr(S_T1), sr(S_KVOFF), i * STG))
        srd, voff = SRD_K, [V_DK + u for u in range(4)]
    elif kind == "V":
        o("s_add_u32 %s, %s, %d" % (sr(S_T1), sr(S_KVOFF), i * STG))
        srd, voff = SRD_V, [V_DV + (u & 1) for u in range(4)]
    else:
        cb, di = i >> 3, i & 7
        o("s_add_u32 %s, %s, %d" % (sr(S_T1), sr(S_WOOFF), di * 32 * 896 + cb * 512))
        srd, voff = SRD_WO, [V_DO + u for u in range(4)]
    for u in range(4):
        o("buffer_load_dwordx4 %s, %s, %s offen offset:%d lds" % (vr(voff[u]), sr(srd, 4), sr(S_T1), u * 1024))
        vm_issue(("dma", t))


def static_boundary(t):
    if t + 1 < NT:
        vm_wait_for(lambda tg: tg == ("dma", t + 1))
    else:
        vm_wait_for(lambda tg: tg == ("dma", t))
    o("s_barrier")
    emit_dma(t + D)


class Stream:
    def __init__(self):
        self.items = []
        self.pre = {}

    def add(self, rd, mm):
        self.items.append((rd, mm))

    def boundary(self, fn):
        self.pre[len(self.items)] = fn

    def emit(self, filler=None, pre_issued=0, tail_reads=None, slot0=0, first_boundary_early=False):
        n = len(self.items)
        allreads = [it[0] for it in self.items] + (tail_reads or [])
        counts = []

        def slot(i):
            return V_AB + 4 * ((i + slot0) % NAB)

        def do_reads(i):
            ins = allreads[i](slot(i))
            for x in ins:
                o(x)
            counts.append(sum(1 for x in ins if x.startswith("ds_")))
        if first_boundary_early:
            self.pre.pop(0)()
        for i in range(pre_issued):
            counts.append(sum(1 for x in allreads[i](0) if x.startswith("ds_")))
        for i in range(pre_issued, min(LOOK, len(allreads))):
            do_reads(i)
        filler = list(filler or [])
        nm = sum(len(it[1](0)) for it in self.items)
        per = (len(filler) + nm - 1) // nm if nm else 0
        fpos = 0

        def emit_unit(u):
            for f in u:
                if f.endswith(":"):
                    o.label(f[:-1])
                else:
                    o(f)
        for i in range(n):
            if i + LOOK < len(allreads):
                do_reads(i + LOOK)
            if i in self.pre:
                self.pre[i]()
            if i % 2 == 0:
                cnt = sum(counts[i + 2:]) if i + 1 < n else sum(counts[i + 1:])
                o("s_waitcnt lgkmcnt(%d)" % min(cnt, 15))
            for x in self.items[i][1](slot(i)):
                o(x)
                for _ in range(per):
                    if fpos < len(filler):
                        emit_unit(filler[fpos])
                        fpos += 1
        while fpos < len(filler):
            emit_unit(filler[fpos])
            fpos += 1


def tr_reads(addr_reg, off0, off1):
    return lambda slot: ["ds_read_b64_tr_b16 %s, %s offset:%d" % (vr(slot, 2), vr(addr_reg), off0),
                         "ds_read_b64_tr_b16 %s, %s offset:%d" % (vr(slot + 2, 2), vr(addr_reg), off1)]


def mfma(dst, a, b, c=None, dk="v", bk="v", ak="v"):
    d = (vr if dk == "v" else ar)(dst, 16)
    A = (vr if ak == "v" else ar)(a, 4)
    B = (vr if bk == "v" else ar)(b, 4)
    C = d if c is None else str(c)
    return "v_mfma_f32_32x32x16_bf16 %s, %s, %s, %s" % (d, A, B, C)


def lohi(lo, hi, off):
    return (lo, off) if off < 65536 else (hi, off - 65536)


def emit_qproj():
    o.c("==== Q projection ====")
    o("s_mul_i32 %s, %s, %d" % (sr(S_T2), sr(S_B), 144 * 896))
    o("s_add_u32 %s, %s, %d" % (sr(S_T2), sr(S_T2), 128 * 896))
    for u in range(4):
        o("s_lshl_b32 %s, %s, 2" % (sr(S_T0), sr(S_W)))
        o("s_add_u32 %s, %s, %d" % (sr(S_T0), sr(S_T0), u))
        o("v_xor_b32 %s, %s, %s" % (vr(V_T), sr(S_T0), vr(V_L)))
        o("v_lshlrev_b32 %s, 4, %s" % (vr(V_T), vr(V_T)))
        o("s_mul_i32 %s, %s, 896" % (sr(S_T1), sr(S_T0)))
        o("v_add_u32 %s, %s, %s" % (vr(V_T), sr(S_T1), vr(V_T)))
        o("s_lshl_b32 %s, %s, 10" % (sr(S_T0), sr(S_T0)))
        o("s_add_u32 %s, %s, %d" % (sr(S_T0), sr(S_T0), XS))
        o("s_mov_b32 m0, %s" % sr(S_T0))
        o("s_nop 0")
        o("buffer_load_dwordx4 %s, %s, %s offen lds" % (vr(V_T), sr(SRD_X, 4), sr(S_T2)))
        vm_issue(("xs", u))
    def xchunk_dma(c):
        if c >= 7:
            return
        o("s_mul_i32 %s, %s, %d" % (sr(S_T2), sr(S_W), 32 * 896))
        o("s_add_u32 %s, %s, %s" % (sr(S_T2), sr(S_T2), sr(S_XOFF)))
        o("s_add_u32 %s, %s, %d" % (sr(S_T2), sr(S_T2), c * 128))
        for i in range(4):
            o("s_add_u32 %s, %s, %d" % (sr(S_T0), sr(S_W4096), XB[c & 1] + i * 1024))
            o("s_mov_b32 m0, %s" % sr(S_T0))
            o("s_add_u32 %s, %s, %d" % (sr(S_T1), sr(S_T2), i * 8 * 896))
            o("buffer_load_dwordx4 %s, %s, %s offen lds" % (vr(V_XD + (i & 1)), sr(SRD_X, 4), sr(S_T1)))
            vm_issue(("xc", c))
    xchunk_dma(0)
    for t in range(0, D):
        emit_dma(t)
    xchunk_dma(1)
    stamp()
    st = Stream()
    for t in range(14):
        def bnd(t=t):
            o.c("---- W tile %d ----" % t)
            if t == 0:
                vm_wait_for(lambda tg: tg[0] == "xs" or tg == ("xc", 0) or tg == ("dma", 1))
                o("s_barrier")
                emit_dma(D)
            else:
                if t % 2 == 1 and t + 1 < 14:
                    vm_wait_for(lambda tg: tg == ("xc", (t + 1) // 2) or tg == ("dma", t + 1))
                    o("s_barrier")
                    emit_dma(t + D)
                else:
                    static_boundary(t)
                if t % 2 == 0:
                    xchunk_dma(t // 2 + 1)
        st.boundary(bnd)
        sb = stage_of(t)
        for sp in range(2):
            s = 2 * t + sp
            xsb = V_XSB + 4 * (s & 1)
            for mt in range(8):
                areg, off0 = lohi(V_WLO + (mt & 3), V_WHI + (mt & 3), sb + (16 * sp) * 512 + (mt >> 2) * 256)
                areg1, off1 = lohi(V_WLO + (mt & 3), V_WHI + (mt & 3), sb + (16 * sp) * 512 + (mt >> 2) * 256 + 4 * 512)
                assert areg1 == areg
                rd = tr_reads(areg, off0, off1)
                xob = A_XOB + 4 * (s & 1)
                if mt == 0:
                    xrd = ["v_xor_b32 %s, %d, %s" % (vr(V_T), (s & 7) << 5, vr(V_XS0)),
                           "ds_read_b128 %s, %s offset:%d" % (vr(xsb, 4), vr(V_T), 256 * (s >> 3)),
                           "v_xor_b32 %s, %d, %s" % (vr(V_T + 1), (s & 3) << 5, vr(V_XOFF)),
                           "v_add_u32 %s, %d, %s" % (vr(V_T + 1), XB[(s >> 2) & 1], vr(V_T + 1)),
                           "ds_read_b128 %s, %s" % (ar(xob, 4), vr(V_T + 1))]
                    rd = (lambda rd=rd, xrd=xrd: (lambda slot: xrd + rd(slot)))()
                mm = (lambda mt=mt, s=s, xob=xob: (lambda slot: [mfma(V_ACC + 16 * mt, slot, xob, 0 if s == 0 else None, bk="a")]))()
                st.add(rd, mm)
            for i in range(2):
                areg, off0 = lohi(V_WSLO + i, V_WSHI + i, sb + (16 * sp) * 512)
                areg1, off1 = lohi(V_WSLO + i, V_WSHI + i, sb + (16 * sp) * 512 + 4 * 512)
                assert areg1 == areg
                rd = tr_reads(areg, off0, off1)
                mm = (lambda i=i, s=s, xsb=xsb: (lambda slot: [mfma(V_ACC_SH + 16 * i, slot, xsb, 0 if s == 0 else None)]))()
                st.add(rd, mm)
    st.emit(first_boundary_early=True)
    o("s_nop 15")
    o("s_nop 7")
    for mt in range(8):
        for i in range(8):
            src = V_ACC + 16 * mt + 2 * i
            o("v_cvt_pk_bf16_f32 %s, %s, %s" % (vr(V_QF_OWN + 8 * mt + i), vr(src), vr(src + 1)))
    for i2 in range(2):
        for i in range(8):
            src = V_ACC_SH + 16 * i2 + 2 * i
            o("v_cvt_pk_bf16_f32 %s, %s, %s" % (vr(V_ACC_SH + 8 * i2 + i), vr(src), vr(src + 1)))
    o("v_lshlrev_b32 %s, 4, %s" % (vr(V_T), vr(V_L)))
    o("v_add_u32 %s, %d, %s" % (vr(V_T), QSI, vr(V_T)))
    o("v_add_u32 %s, %s, %s" % (vr(V_T + 1), sr(S_W4096), vr(V_T)))
    for k in range(4):
        o("ds_write_b128 %s, %s offset:%d" % (vr(V_T + 1), vr(V_ACC_SH + 4 * k, 4), k * 1024))
    o("s_waitcnt lgkmcnt(0)")
    o("s_barrier")
    for ks in range(16):
        o("ds_read_b128 %s, %s offset:%d" % (vr(V_QF_SH + 4 * ks, 4), vr(V_T), ks * 1024))
        if ks % 8 == 7:
            o("s_waitcnt lgkmcnt(0)")


OUTLINE = []


def softmax_code(sreg, vm, vl, aO):
    U = []
    lab_rs, lab_back = o.newlabel("LRS"), o.newlabel("LRB")
    t0, t1, t2 = V_T, V_T + 1, V_T + 2
    U.append(["v_max3_f32 %s, %s, %s, %s" % (vr(t0), vr(sreg), vr(sreg + 1), vr(sreg + 2))])
    for i in range(3, 15, 2):
        U.append(["v_max3_f32 %s, %s, %s, %s" % (vr(t0), vr(t0), vr(sreg + i), vr(sreg + i + 1))])
    U.append(["v_max_f32 %s, %s, %s" % (vr(t0), vr(t0), vr(sreg + 15))])
    U.append(["v_mov_b32 %s, %s" % (vr(t1), vr(t0))])
    U.append(["s_nop 1"])
    U.append(["v_permlane32_swap_b32 %s, %s" % (vr(t0), vr(t1))])
    U.append(["v_max_f32 %s, %s, %s" % (vr(t0), vr(t0), vr(t1))])
    U.append(["v_mul_f32 %s, %s, %s" % (vr(t0), sr(S_C), vr(t0))])
    U.append(["v_sub_f32 %s, %s, %s" % (vr(t1), vr(t0), vr(vm))])
    U.append(["v_cmp_lt_f32 vcc, %s, %s" % (sr(S_T), vr(t1))])
    U.append(["s_nop 0"])
    U.append(["s_cbranch_vccnz %s" % lab_rs, lab_back + ":"])
    B = [lab_rs + ":"]
    B.append("v_max_f32 %s, %s, %s" % (vr(t1), vr(vm), vr(t0)))
    B.append("v_sub_f32 %s, %s, %s" % (vr(t2), vr(vm), vr(t1)))
    B.append("v_exp_f32 %s, %s" % (vr(t2), vr(t2)))
    B.append("v_mov_b32 %s, %s" % (vr(vm), vr(t1)))
    B.append("s_nop 0")
    B.append("v_mul_f32 %s, %s, %s" % (vr(vl), vr(vl), vr(t2)))
    B.append("s_nop 15")
    for r in range(128):
        tt = V_T + 3 + (r % 4)
        B.append("v_accvgpr_read_b32 %s, %s" % (vr(tt), ar(aO + r)))
        B.append("v_mul_f32 %s, %s, %s" % (vr(tt), vr(tt), vr(t2)))
        B.append("v_accvgpr_write_b32 %s, %s" % (ar(aO + r), vr(tt)))
    B.append("s_nop 1")
    B.append("s_branch %s" % lab_back)
    OUTLINE.append(B)
    for i in range(16):
        U.append(["v_fma_f32 %s, %s, %s, -%s" % (vr(sreg + i), vr(sreg + i), sr(S_C), vr(vm))])
    for i in range(16):
        U.append(["v_exp_f32 %s, %s" % (vr(sreg + i), vr(sreg + i))])
    U.append(["s_nop 0"])
    for i in range(16):
        U.append(["v_add_f32 %s, %s, %s" % (vr(vl), vr(vl), vr(sreg + i))])
    for i in range(8):
        U.append(["v_cvt_pk_bf16_f32 %s, %s, %s" % (vr(sreg + i), vr(sreg + 2 * i), vr(sreg + 2 * i + 1))])
    return U


def emit_outline():
    lab = o.newlabel("LOUT")
    o("s_branch %s" % lab)
    for B in OUTLINE:
        for f in B:
            if f.endswith(":"):
                o.label(f[:-1])
            else:
                o(f)
    del OUTLINE[:]
    o.label(lab)


def k_reads(s):
    return lambda slot: ["ds_read_b128 %s, %s offset:%d" % (vr(slot, 4), vr(V_KA + (s & 7)), 256 * (s >> 3))]


def v_reads(idx):
    ks, dt = idx // 8, idx % 8
    off0 = (16 * ks) * 512 + (dt >> 2) * 256
    return tr_reads(V_VA + (dt & 3), off0, off0 + 8 * 512)


K_TAIL = [k_reads(s) for s in range(LOOK)]
V_TAIL = [v_reads(i) for i in range(LOOK)]


def seg_K(sbuf, s_sh, filler, pre_issued, boundary, tail):
    st = Stream()
    if boundary:
        st.boundary(boundary)
    for s in range(16):
        if s_sh:
            mm = (lambda s=s: (lambda slot: [mfma(sbuf, slot, V_QF_OWN + 4 * s, 0 if s == 0 else None),
                                             mfma(V_S_SH, slot, V_QF_SH + 4 * s, 0 if s == 0 else None)]))()
        else:
            mm = (lambda s=s: (lambda slot: [mfma(sbuf, slot, V_QF_OWN + 4 * s, 0 if s == 0 else None)]))()
        st.add(k_reads(s), mm)
    st.emit(filler=filler, pre_issued=pre_issued, tail_reads=tail)


def seg_V(pbuf, pv_sh, boundary, tail):
    st = Stream()
    st.boundary(boundary)
    for idx in range(16):
        ks, dt = idx // 8, idx % 8
        if pv_sh:
            mm = (lambda ks=ks, dt=dt: (lambda slot: [mfma(A_O_OWN + 16 * dt, slot, pbuf + 4 * ks, dk="a"),
                                                      mfma(A_O_SH + 16 * dt, slot, V_S_SH + 4 * ks, dk="a")]))()
        else:
            mm = (lambda ks=ks, dt=dt: (lambda slot: [mfma(A_O_OWN + 16 * dt, slot, pbuf + 4 * ks, dk="a")]))()
        st.add(v_reads(idx), mm)
    st.emit(pre_issued=LOOK, tail_reads=tail)


def dyn_dma(kind):
    def f():
        o("s_waitcnt vmcnt(16)")
        o("s_barrier")
        if kind == "K":
            o("s_add_u32 %s, %s, %s" % (sr(S_T0), sr(S_T2), sr(S_W4096)))
            o("s_mov_b32 m0, %s" % sr(S_T0))
            o("s_add_u32 %s, %s, %d" % (sr(S_T1), sr(S_KPF), STG))
            for u in range(4):
                o("buffer_load_dwordx4 %s, %s, %s offen offset:%d lds" % (vr(V_DK + u), sr(SRD_K, 4), sr(S_T1), u * 1024))
        else:
            o("s_add_u32 %s, %s, %s" % (sr(S_T0), sr(S_KST), sr(S_W4096)))
            o("s_mov_b32 m0, %s" % sr(S_T0))
            o("s_nop 0")
            for u in range(4):
                o("buffer_load_dwordx4 %s, %s, %s offen offset:%d lds" % (vr(V_DV + (u & 1)), sr(SRD_V, 4), sr(S_KPF), u * 1024))
    return f


def nxt(sreg_dst, sreg_src):
    o("s_add_u32 %s, %s, %d" % (sr(sreg_dst), sr(sreg_src), STG))
    o("s_cmp_ge_u32 %s, %d" % (sr(sreg_dst), RING))
    o("s_cselect_b32 %s, 0, %s" % (sr(sreg_dst), sr(sreg_dst)))


def emit_attn_pair(dyn, j, par):
    sb_cur, sb_nxt = V_S[par], V_S[1 - par]
    last = (not dyn and j == 15)
    if dyn:
        o("s_and_b32 %s, %s, 3" % (sr(S_T0), sr(S_J)))
        o("s_cmp_eq_u32 %s, %s" % (sr(S_T0), sr(S_W)))
        o("s_cselect_b32 %s, 1, 0" % sr(S_ACT))
        o("s_add_u32 %s, %s, 1" % (sr(S_T0), sr(S_J)))
        o("s_and_b32 %s, %s, 3" % (sr(S_T0), sr(S_T0)))
        o("s_cmp_eq_u32 %s, %s" % (sr(S_T0), sr(S_W)))
        o("s_cselect_b32 %s, 1, 0" % sr(S_ACTN))
        bnd = dyn_dma("K")
    else:
        o("s_cmp_eq_u32 %s, %d" % (sr(S_W), j & 3))
        o("s_cselect_b32 %s, 1, 0" % sr(S_ACT))
        o("s_cmp_eq_u32 %s, %d" % (sr(S_W), (j + 1) & 3))
        o("s_cselect_b32 %s, 1, 0" % sr(S_ACTN))
        bnd = (lambda: static_boundary(15 + 2 * j)) if not last else None
    labs = [o.newlabel("LK") for _ in range(4)]
    if not last:
        o("s_cmp_eq_u32 %s, 1" % sr(S_ACTN))
        o("s_cbranch_scc1 %s" % labs[0])
    o("s_cmp_eq_u32 %s, 1" % sr(S_ACT))
    o("s_cbranch_scc1 %s" % labs[1])
    variants = [(False, False), (True, False), (False, True)]
    if last:
        variants = [(False, False), None, (False, True)]
    for vi, var in enumerate(variants):
        if var is None:
            continue
        s_sh, sm_sh = var
        if vi == 1:
            o.label(labs[0])
        if vi == 2:
            o.label(labs[1])
        filler = softmax_code(sb_cur, V_M_OWN, V_L_OWN, A_O_OWN)
        if sm_sh:
            filler += softmax_code(V_S_SH, V_M_SH, V_L_SH, A_O_SH)
        if last:
            for u in filler:
                for f in u:
                    if f.endswith(":"):
                        o.label(f[:-1])
                    else:
                        o(f)
        else:
            seg_K(sb_nxt, s_sh, filler, LOOK, bnd, V_TAIL)
        if vi < 2:
            o("s_branch %s" % labs[2])
    o.label(labs[2])
    if last:
        for i in range(LOOK):
            for x in V_TAIL[i](V_AB + 4 * ((16 + i) % NAB)):
                o(x)
    if dyn:
        nxt(S_T0, S_VST)
        o("s_sub_u32 %s, %s, %s" % (sr(S_DK), sr(S_T0), sr(S_KST)))
        for i in range(8):
            o("v_add_u32 %s, %s, %s" % (vr(V_KA + i), sr(S_DK), vr(V_KA + i)))
        o("s_mov_b32 %s, %s" % (sr(S_DK), sr(S_T0)))
        vb = dyn_dma("V")
    else:
        if j + 2 <= 15:
            dk = (stage_of(17 + 2 * j) - stage_of(15 + 2 * j)) & 0xffffffff
            for i in range(8):
                o("v_add_u32 %s, %d, %s" % (vr(V_KA + i), dk, vr(V_KA + i)))
        tv = 16 + 2 * j if j < 15 else 45
        vb = lambda: static_boundary(tv)
    l1, l2 = o.newlabel("LV"), o.newlabel("LV")
    o("s_cmp_eq_u32 %s, 1" % sr(S_ACT))
    o("s_cbranch_scc1 %s" % l1)
    tail = K_TAIL if (dyn or j + 2 <= 15) else None
    seg_V(sb_cur, False, vb, tail)
    o("s_branch %s" % l2)
    o.label(l1)
    seg_V(sb_cur, True, vb, tail)
    o.label(l2)
    if dyn:
        o("s_mov_b32 %s, %s" % (sr(S_T2), sr(S_VST)))
        nxt(S_T0, S_DK)
        o("s_sub_u32 %s, %s, %s" % (sr(S_DV), sr(S_T0), sr(S_VST)))
        for i in range(4):
            o("v_add_u32 %s, %s, %s" % (vr(V_VA + i), sr(S_DV), vr(V_VA + i)))
        o("s_mov_b32 %s, %s" % (sr(S_VST), sr(S_T0)))
        o("s_mov_b32 %s, %s" % (sr(S_KST), sr(S_DK)))
        o("s_add_u32 %s, %s, %d" % (sr(S_KPF), sr(S_KPF), STG))
        o("s_add_u32 %s, %s, 1" % (sr(S_J), sr(S_J)))
    else:
        if j < 15:
            tv_next = 18 + 2 * j if j + 1 < 15 else 45
            tv_cur = 16 + 2 * j
            dv = (stage_of(tv_next) - stage_of(tv_cur)) & 0xffffffff
            for i in range(4):
                o("v_add_u32 %s, %d, %s" % (vr(V_VA + i), dv, vr(V_VA + i)))


def emit_attention():
    o.c("==== attention ====")
    o("v_mov_b32 %s, 0xf149f2ca" % vr(V_M_OWN))
    o("v_mov_b32 %s, 0xf149f2ca" % vr(V_M_SH))
    o("v_mov_b32 %s, 0" % vr(V_L_OWN))
    o("v_mov_b32 %s, 0" % vr(V_L_SH))
    for r in range(256):
        o("v_accvgpr_write_b32 %s, 0" % ar(r))
    for i in range(8):
        o("v_add_u32 %s, %d, %s" % (vr(V_KA + i), stage_of(14), vr(V_KA + i)))
    for i in range(4):
        o("v_add_u32 %s, %d, %s" % (vr(V_VA + i), stage_of(16), vr(V_VA + i)))
    l1, l2 = o.newlabel("LP"), o.newlabel("LP")
    o("s_cmp_eq_u32 %s, 0" % sr(S_W))
    o("s_cbranch_scc1 %s" % l1)
    seg_K(V_S[0], False, None, 0, lambda: static_boundary(14), K_TAIL)
    o("s_branch %s" % l2)
    o.label(l1)
    seg_K(V_S[0], True, None, 0, lambda: static_boundary(14), K_TAIL)
    o.label(l2)
    dk = (stage_of(15) - stage_of(14)) & 0xffffffff
    return dk


def emit_attention_main():
    NDYN = 10
    o("s_mov_b32 %s, 0" % sr(S_J))
    o("s_mov_b32 %s, %d" % (sr(S_KST), stage_of(15)))
    o("s_mov_b32 %s, %d" % (sr(S_VST), stage_of(16)))
    o("s_mov_b32 %s, %d" % (sr(S_T2), stage_of(14)))
    o("s_add_u32 %s, %s, %d" % (sr(S_KPF), sr(S_KVOFF), 3 * STG))
    o.label("L_attn_loop")
    emit_attn_pair(True, None, 0)
    emit_attn_pair(True, None, 1)
    o("s_cmp_lt_u32 %s, %d" % (sr(S_J), NDYN))
    o("s_cbranch_scc1 L_attn_loop")
    for t in range(15 + D, 15 + 2 * NDYN + D):
        for u in range(4):
            vm_issue(("dma", t))
    for j in range(NDYN, 16):
        emit_attn_pair(False, j, j & 1)


SCR = stage_of(45)


def emit_finalize():
    o.c("==== finalize ====")
    t0, t1, t2, t3 = V_T, V_T + 1, V_T + 2, V_T + 3
    vcomp, vl4, vsc = V_T + 4, V_T + 5, V_T + 6
    o("s_barrier")
    for vl in (V_L_OWN, V_L_SH):
        o("v_mov_b32 %s, %s" % (vr(t0), vr(vl)))
        o("s_nop 1")
        o("v_permlane32_swap_b32 %s, %s" % (vr(vl), vr(t0)))
        o("v_add_f32 %s, %s, %s" % (vr(vl), vr(vl), vr(t0)))
    o("v_lshlrev_b32 %s, 2, %s" % (vr(vl4), vr(V_L)))
    o("v_add_u32 %s, %d, %s" % (vr(vl4), SCR, vr(vl4)))
    o("s_lshl_b32 %s, %s, 8" % (sr(S_T0), sr(S_W)))
    o("v_add_u32 %s, %s, %s" % (vr(t1), sr(S_T0), vr(vl4)))
    o("ds_write_b32 %s, %s" % (vr(t1), vr(V_M_SH)))
    o("ds_write_b32 %s, %s offset:1024" % (vr(t1), vr(V_L_SH)))
    o("v_rcp_f32 %s, %s" % (vr(t2), vr(V_L_OWN)))
    o("s_waitcnt lgkmcnt(0)")
    o("s_barrier")
    mreg, lreg = V_S[0], V_S[0] + 4
    for w4 in range(4):
        o("ds_read_b32 %s, %s offset:%d" % (vr(mreg + w4), vr(vl4), w4 * 256))
        o("ds_read_b32 %s, %s offset:%d" % (vr(lreg + w4), vr(vl4), 1024 + w4 * 256))
    for dt in range(8):
        for i in range(8):
            a = A_O_OWN + 16 * dt + 2 * i
            o("v_accvgpr_read_b32 %s, %s" % (vr(t0), ar(a)))
            o("v_accvgpr_read_b32 %s, %s" % (vr(t1), ar(a + 1)))
            o("v_mul_f32 %s, %s, %s" % (vr(t0), vr(t0), vr(t2)))
            o("v_mul_f32 %s, %s, %s" % (vr(t1), vr(t1), vr(t2)))
            o("v_cvt_pk_bf16_f32 %s, %s, %s" % (vr(t0), vr(t0), vr(t1)))
            o("v_accvgpr_write_b32 %s, %s" % (ar(A_OF_OWN + 8 * dt + i), vr(t0)))
    o("s_waitcnt lgkmcnt(0)")
    o("v_max_f32 %s, %s, %s" % (vr(t0), vr(mreg), vr(mreg + 1)))
    o("v_max3_f32 %s, %s, %s, %s" % (vr(t0), vr(t0), vr(mreg + 2), vr(mreg + 3)))
    for w4 in range(4):
        o("v_sub_f32 %s, %s, %s" % (vr(mreg + w4), vr(mreg + w4), vr(t0)))
        o("v_exp_f32 %s, %s" % (vr(mreg + w4), vr(mreg + w4)))
    o("s_nop 0")
    o("v_mul_f32 %s, %s, %s" % (vr(t1), vr(mreg), vr(lreg)))
    for w4 in range(1, 4):
        o("v_fma_f32 %s, %s, %s, %s" % (vr(t1), vr(mreg + w4), vr(lreg + w4), vr(t1)))
    o("v_rcp_f32 %s, %s" % (vr(t1), vr(t1)))
    o("v_sub_f32 %s, %s, %s" % (vr(t3), vr(V_M_SH), vr(t0)))
    o("v_exp_f32 %s, %s" % (vr(t3), vr(t3)))
    o("s_nop 0")
    o("v_mul_f32 %s, %s, %s" % (vr(vsc), vr(t3), vr(t1)))
    o("s_barrier")
    o("v_and_b32 %s, 15, %s" % (vr(vcomp), vr(V_L)))
    o("v_lshrrev_b32 %s, 5, %s" % (vr(t0), vr(V_L)))
    o("v_lshl_add_u32 %s, %s, 4, %s" % (vr(vcomp), vr(t0), vr(vcomp)))
    o("v_lshlrev_b32 %s, 4, %s" % (vr(vcomp), vr(vcomp)))
    o("s_mov_b32 exec_lo, 0xffff")
    o("s_mov_b32 exec_hi, 0xffff")
    bases = [MISC, MISC + 16384, MISC + 32768, SCR]
    for w2 in range(4):
        o("s_add_u32 %s, %s, %d" % (sr(S_T0), sr(S_W4096), bases[w2]))
        o("v_add_u32 %s, %s, %s" % (vr(t0), sr(S_T0), vr(vcomp)))
        for g in range(8):
            for k in range(4):
                a = A_O_SH + (2 * w2) * 16 + 4 * g + k
                o("v_accvgpr_read_b32 %s, %s" % (vr(V_AB + k), ar(a)))
                o("v_mul_f32 %s, %s, %s" % (vr(V_AB + k), vr(V_AB + k), vr(vsc)))
            o("ds_write_b128 %s, %s offset:%d" % (vr(t0), vr(V_AB, 4), g * 512))
    o("s_waitcnt lgkmcnt(0)")
    o("s_barrier")
    o("s_mov_b32 %s, %d" % (sr(S_T0), SCR))
    o("s_mul_i32 %s, %s, 16384" % (sr(S_T1), sr(S_W)))
    o("s_add_u32 %s, %s, %d" % (sr(S_T1), sr(S_T1), MISC))
    o("s_cmp_lt_u32 %s, 3" % sr(S_W))
    o("s_cselect_b32 %s, %s, %s" % (sr(S_T0), sr(S_T1), sr(S_T0)))
    o("v_add_u32 %s, %s, %s" % (vr(t0), sr(S_T0), vr(vcomp)))
    dst = V_S[0]
    for g in range(8):
        for src in range(4):
            o("ds_read_b128 %s, %s offset:%d" % (vr(V_AB + 4 * src, 4), vr(t0), src * 4096 + g * 512))
        o("s_waitcnt lgkmcnt(0)")
        for k in range(4):
            o("v_add_f32 %s, %s, %s" % (vr(dst + 4 * g + k), vr(V_AB + k), vr(V_AB + 4 + k)))
            o("v_add_f32 %s, %s, %s" % (vr(V_AB + 8 + k), vr(V_AB + 8 + k), vr(V_AB + 12 + k)))
            o("v_add_f32 %s, %s, %s" % (vr(dst + 4 * g + k), vr(dst + 4 * g + k), vr(V_AB + 8 + k)))
    o("s_mov_b64 exec, -1")
    for i in range(16):
        o("v_cvt_pk_bf16_f32 %s, %s, %s" % (vr(dst + i), vr(dst + 2 * i), vr(dst + 2 * i + 1)))
    o("s_barrier")
    o("v_lshlrev_b32 %s, 4, %s" % (vr(t0), vr(V_L)))
    o("v_add_u32 %s, %d, %s" % (vr(t0), MISC, vr(t0)))
    o("v_add_u32 %s, %s, %s" % (vr(t1), sr(S_W4096), vr(t0)))
    for k in range(4):
        o("ds_write_b128 %s, %s offset:%d" % (vr(t1), vr(dst + 4 * k, 4), k * 1024))
    o("s_waitcnt lgkmcnt(0)")
    o("s_barrier")
    for ks in range(16):
        o("ds_read_b128 %s, %s offset:%d" % (ar(A_OF_SH + 4 * ks, 4), vr(t0), ks * 1024))
        if ks % 8 == 7:
            o("s_waitcnt lgkmcnt(0)")


def emit_outproj(vst_cur):
    o.c("==== output projection (per-head partial) ====")
    for i in range(4):
        o("v_subrev_u32 %s, %d, %s" % (vr(V_VLO + i), vst_cur, vr(V_VA + i)))
        o("v_add_u32 %s, 0x10000, %s" % (vr(V_VHI + i), vr(V_VLO + i)))
    for cb in range(2):
        if cb == 0:
            o("s_lshl_b32 %s, %s, 1" % (sr(S_MT0), sr(S_W)))
            o("s_add_u32 %s, %s, 1" % (sr(S_MT1), sr(S_MT0)))
        else:
            o("s_lshl_b32 %s, %s, 1" % (sr(S_T0), sr(S_W)))
            o("s_add_u32 %s, %s, 1" % (sr(S_T1), sr(S_T0)))
            o("s_add_u32 %s, %s, 2" % (sr(S_T2), sr(S_W)))
            o("s_cmp_lt_u32 %s, 2" % sr(S_W))
            o("s_cselect_b32 %s, %s, %s" % (sr(S_MT0), sr(S_T0), sr(S_T2)))
            o("s_cselect_b32 %s, %s, %s" % (sr(S_MT1), sr(S_T1), sr(S_T2)))
        for i2, smt in enumerate((S_MT0, S_MT1)):
            o("s_and_b32 %s, %s, 3" % (sr(S_T0), sr(smt)))
            o("s_lshl_b32 %s, %s, 6" % (sr(S_T0), sr(S_T0)))
            o("s_lshr_b32 %s, %s, 2" % (sr(S_T1), sr(smt)))
            o("s_lshl_b32 %s, %s, 8" % (sr(S_T1), sr(S_T1)))
            o("v_xor_b32 %s, %s, %s" % (vr(V_WSLO + i2), sr(S_T0), vr(V_VLO)))
            o("v_add_u32 %s, %s, %s" % (vr(V_WSLO + i2), sr(S_T1), vr(V_WSLO + i2)))
            o("v_add_u32 %s, 0x10000, %s" % (vr(V_WSHI + i2), vr(V_WSLO + i2)))
        nmt = 8 if cb == 0 else 6
        st = Stream()
        for di in range(8):
            t = 46 + cb * 8 + di
            st.boundary((lambda t=t: (o.c("---- wo tile %d ----" % (t - 46)), static_boundary(t))))
            sb = stage_of(t)
            for tt in range(2):
                ks = 2 * di + tt
                first = (di == 0 and tt == 0)
                for mt in range(nmt):
                    areg, off0 = lohi(V_VLO + (mt & 3), V_VHI + (mt & 3), sb + (16 * tt) * 512 + (mt >> 2) * 256)
                    areg1, off1 = lohi(V_VLO + (mt & 3), V_VHI + (mt & 3), sb + (16 * tt) * 512 + (mt >> 2) * 256 + 8 * 512)
                    assert areg == areg1
                    mm = (lambda mt=mt, ks=ks, first=first: (lambda slot: [mfma(V_ACC + 16 * mt, slot, A_OF_OWN + 4 * ks, 0 if first else None, bk="a")]))()
                    st.add(tr_reads(areg, off0, off1), mm)
                for i2 in range(2):
                    areg, off0 = lohi(V_WSLO + i2, V_WSHI + i2, sb + (16 * tt) * 512)
                    areg1, off1 = lohi(V_WSLO + i2, V_WSHI + i2, sb + (16 * tt) * 512 + 8 * 512)
                    assert areg == areg1
                    mm = (lambda i2=i2, ks=ks, first=first: (lambda slot: [mfma(V_ACC_SH + 16 * i2, slot, A_OF_SH + 4 * ks, 0 if first else None, bk="a")]))()
                    st.add(tr_reads(areg, off0, off1), mm)
        st.emit()
        o("s_nop 15")
        o("s_nop 7")
        o("v_lshlrev_b32 %s, 4, %s" % (vr(V_T), vr(V_L)))
        o("s_mul_i32 %s, %s, %d" % (sr(S_T2), sr(S_W), 28 * 1024))
        o("s_add_u32 %s, %s, %s" % (sr(S_T2), sr(S_T2), sr(S_PIDX)))
        for mt in range(nmt):
            for rp in range(2):
                src = V_ACC + 16 * mt + 8 * rp
                for i in range(4):
                    o("v_cvt_pk_bf16_f32 %s, %s, %s" % (vr(src + i), vr(src + 2 * i), vr(src + 2 * i + 1)))
                o("s_add_u32 %s, %s, %d" % (sr(S_T0), sr(S_T2), ((cb * 8 + mt) * 2 + rp) * 1024))
                o("buffer_store_dwordx4 %s, %s, %s, %s offen" % (vr(src, 4), vr(V_T), sr(SRD_WS, 4), sr(S_T0)))
                vm_issue(("st", cb, mt, rp))
        for i2, smt in enumerate((S_MT0, S_MT1)):
            for rp in range(2):
                src = V_ACC_SH + 16 * i2 + 8 * rp
                for i in range(4):
                    o("v_cvt_pk_bf16_f32 %s, %s, %s" % (vr(src + i), vr(src + 2 * i), vr(src + 2 * i + 1)))
                o("s_lshl_b32 %s, %s, 11" % (sr(S_T0), sr(smt)))
                o("s_add_u32 %s, %s, %d" % (sr(S_T0), sr(S_T0), 114688 + (cb * 16 + rp) * 1024))
                o("s_add_u32 %s, %s, %s" % (sr(S_T0), sr(S_T0), sr(S_PIDX)))
                o("buffer_store_dwordx4 %s, %s, %s, %s offen" % (vr(src, 4), vr(V_T), sr(SRD_WS, 4), sr(S_T0)))
                vm_issue(("st", cb, "s", i2, rp))


def emit_reduce_kernel():
    r = Asm()
    r.label("reduce_kernel")
    r("s_load_dwordx2 s[4:5], s[0:1], 96")
    r("s_load_dwordx2 s[6:7], s[0:1], 80")
    r("v_lshrrev_b32 v1, 6, v0")
    r("v_and_b32 v2, 63, v0")
    r("s_nop 1")
    r("v_readfirstlane_b32 s3, v1")
    r("s_lshl_b32 s8, s2, 2")
    r("s_add_u32 s8, s8, s3")
    r("s_cmp_ge_u32 s8, 2240")
    r("s_cbranch_scc1 L_rend")
    r("s_mul_i32 s9, s8, 7490")
    r("s_lshr_b32 s9, s9, 20")
    r("s_mul_i32 s10, s9, 140")
    r("s_sub_u32 s10, s8, s10")
    r("s_waitcnt lgkmcnt(0)")
    r("s_mov_b32 s12, s4")
    r("s_and_b32 s13, s5, 0xffff")
    r("s_mov_b32 s14, 268435456")
    r("s_mov_b32 s15, 0x20000")
    r("s_mov_b32 s16, s6")
    r("s_and_b32 s17, s7, 0xffff")
    r("s_mov_b32 s18, %d" % (8 * 144 * 896 * 2))
    r("s_mov_b32 s19, 0x20000")
    r("s_mul_i32 s11, s9, %d" % (16 * PART_BYTES))
    r("s_lshl_b32 s20, s10, 10")
    r("s_add_u32 s11, s11, s20")
    r("v_lshlrev_b32 v3, 4, v2")
    for h in range(16):
        r("buffer_load_dwordx4 v[%d:%d], v3, s[12:15], s11 offen" % (16 + 4 * h, 19 + 4 * h))
        if h < 15:
            r("s_add_u32 s11, s11, %d" % PART_BYTES)
    for k in range(8):
        r("v_mov_b32 v%d, 0" % (4 + k))
    for h in range(16):
        r("s_waitcnt vmcnt(%d)" % (15 - h))
        for k in range(4):
            src = 16 + 4 * h + k
            r("v_lshlrev_b32 v12, 16, v%d" % src)
            r("v_and_b32 v13, 0xffff0000, v%d" % src)
            r("v_add_f32 v%d, v%d, v12" % (4 + 2 * k, 4 + 2 * k))
            r("v_add_f32 v%d, v%d, v13" % (5 + 2 * k, 5 + 2 * k))
    for k in range(4):
        r("v_cvt_pk_bf16_f32 v%d, v%d, v%d" % (4 + k, 4 + 2 * k, 5 + 2 * k))
    r("s_and_b32 s21, s9, 7")
    r("s_lshr_b32 s22, s9, 3")
    r("s_cmp_ge_u32 s10, 112")
    r("s_cbranch_scc1 L_rsh")
    r("s_mul_i32 s23, s10, 9363")
    r("s_lshr_b32 s23, s23, 18")
    r("s_mul_i32 s24, s23, 28")
    r("s_sub_u32 s24, s10, s24")
    r("s_lshl_b32 s23, s23, 5")
    r("s_branch L_rjoin")
    r.label("L_rsh")
    r("s_sub_u32 s24, s10, 112")
    r("s_movk_i32 s23, 128")
    r("v_and_b32 v12, 31, v2")
    r("v_cmp_gt_u32 vcc, 16, v12")
    r("s_and_b64 exec, exec, vcc")
    r.label("L_rjoin")
    r("s_lshl_b32 s25, s24, 4")
    r("s_mul_i32 s26, s22, 448")
    r("s_add_u32 s25, s25, s26")
    r("s_mul_i32 s26, s21, 144")
    r("s_add_u32 s26, s26, s23")
    r("v_and_b32 v12, 31, v2")
    r("v_add_u32 v12, s26, v12")
    r("s_movk_i32 s27, 896")
    r("v_mul_u32_u24 v12, v12, s27")
    r("v_lshrrev_b32 v13, 5, v2")
    r("v_lshl_add_u32 v12, v13, 2, v12")
    r("v_add_u32 v12, s25, v12")
    r("v_lshlrev_b32 v12, 1, v12")
    r("buffer_store_dwordx2 v[4:5], v12, s[16:19], 0 offen")
    r("buffer_store_dwordx2 v[6:7], v12, s[16:19], 0 offen offset:16")
    r.label("L_rend")
    r("s_endpgm")
    return r.text()


def main():
    hdr = open("concat_heads__mha_block_cached__mha_block_cached__near_ridge.s.ref").read().split(".amdgcn_target")[0]
    hdr_lines = [ln for ln in hdr.splitlines() if "@launch" not in ln and not ln.startswith("; Override") and not ln.startswith("; grid=ceil")]
    stamp()
    emit_prologue()
    emit_qproj()
    stamp()
    if DBG == 1:
        dbg_dump(list(range(V_QF_OWN, V_QF_OWN + 64)) + list(range(V_QF_SH, V_QF_SH + 64)))
        o("s_branch L_end")
    emit_attention_all()
    emit_outline()
    stamp()
    if DBG == 2:
        dbg_dump([V_M_OWN, V_L_OWN, V_M_SH, V_L_SH])
        dbg_dump(list(range(256)), kind="a", base=4)
        o("s_branch L_end")
    emit_finalize()
    stamp()
    emit_outproj(stage_of(45))
    stamp()
    stamp_dump()
    o.label("L_end")
    o("s_endpgm")
    body = o.text()
    out = "\n".join(hdr_lines) + "\n"
    out += "; @launch kernel=%s grid=(256,1,1) block=(256,1,1) lds=%d\n" % (KNAME, LDS_TOTAL)
    out += "; @launch kernel=reduce_kernel grid=(560,1,1) block=(256,1,1) lds=0\n"
    out += '.amdgcn_target "amdgcn-amd-amdhsa--gfx950"\n.text\n.globl %s\n.p2align 8\n.type %s,@function\n%s:\n' % (KNAME, KNAME, KNAME)
    out += body
    out += ".p2align 8\n" + emit_reduce_kernel()
    out += '''.section .rodata,"a"
.p2align 6
.amdhsa_kernel %s
  .amdhsa_next_free_vgpr 512
  .amdhsa_next_free_sgpr 102
  .amdhsa_accum_offset 256
  .amdhsa_group_segment_fixed_size 0
  .amdhsa_kernarg_size 104
  .amdhsa_user_sgpr_count 2
  .amdhsa_user_sgpr_kernarg_segment_ptr 1
  .amdhsa_system_sgpr_workgroup_id_x 1
.end_amdhsa_kernel
.p2align 6
.amdhsa_kernel reduce_kernel
  .amdhsa_next_free_vgpr 80
  .amdhsa_next_free_sgpr 32
  .amdhsa_accum_offset 80
  .amdhsa_group_segment_fixed_size 0
  .amdhsa_kernarg_size 104
  .amdhsa_user_sgpr_count 2
  .amdhsa_user_sgpr_kernarg_segment_ptr 1
  .amdhsa_system_sgpr_workgroup_id_x 1
.end_amdhsa_kernel
''' % KNAME
    open("concat_heads__mha_block_cached__mha_block_cached__near_ridge.s", "w").write(out)


def emit_attention_all():
    o.c("==== attention ====")
    o("v_mov_b32 %s, 0xf149f2ca" % vr(V_M_OWN))
    o("v_mov_b32 %s, 0xf149f2ca" % vr(V_M_SH))
    o("v_mov_b32 %s, 0" % vr(V_L_OWN))
    o("v_mov_b32 %s, 0" % vr(V_L_SH))
    for r in range(256):
        o("v_accvgpr_write_b32 %s, 0" % ar(r))
    for i in range(8):
        o("v_add_u32 %s, %d, %s" % (vr(V_KA + i), stage_of(14), vr(V_KA + i)))
    for i in range(4):
        o("v_add_u32 %s, %d, %s" % (vr(V_VA + i), stage_of(16), vr(V_VA + i)))
    l1, l2 = o.newlabel("LP"), o.newlabel("LP")
    o("s_cmp_eq_u32 %s, 0" % sr(S_W))
    o("s_cbranch_scc1 %s" % l1)
    seg_K(V_S[0], False, None, 0, lambda: static_boundary(14), None)
    o("s_branch %s" % l2)
    o.label(l1)
    seg_K(V_S[0], True, None, 0, lambda: static_boundary(14), None)
    o.label(l2)
    dk = (stage_of(15) - stage_of(14)) & 0xffffffff
    for i in range(8):
        o("v_add_u32 %s, %d, %s" % (vr(V_KA + i), dk, vr(V_KA + i)))
    for i in range(LOOK):
        for x in K_TAIL[i](V_AB + 4 * (i % NAB)):
            o(x)
    emit_attention_main()


main()
```
